```python
import torch

def _softmax(x, axis=-1):
    return torch.softmax(x, dim=axis)
def _gelu(x):
    return torch.nn.functional.gelu(x, approximate="tanh")
def _silu(x):
    return torch.nn.functional.silu(x)
def _sigmoid(x):
    return torch.sigmoid(x)
def _layernorm(x, axis=-1, eps=1e-5):
    m = x.mean(dim=axis, keepdim=True)
    v = x.var(dim=axis, keepdim=True, unbiased=False)
    return (x - m) / torch.sqrt(v + eps)
def _scatter_add(tgt, idx, src, axis=0):
    return tgt.clone().index_add_(axis, idx, src)
def _segment_sum(src, seg, n):
    out = torch.zeros((n,) + src.shape[1:], dtype=src.dtype)
    return out.index_add_(0, seg, src)
def _pad(x, pw):
    flat = tuple(v for pair in reversed(pw) for v in pair)
    return torch.nn.functional.pad(x, flat)

kernel_name = 'sequential_preLN__grouped_kv_mqa__mixer_s_mlp__prompt'

def setup_inputs():

    _w = (lambda a: (lambda t: t.to(torch.bfloat16) if t.is_floating_point() else t)(torch.as_tensor(a)))
    def _A_setup():
        B, S, D, H = 1, 2048, 640, 32
        Dh = D // H
        return {
            "x": _w((lambda *s: torch.randn(*s, dtype=torch.bfloat16) * 0.05)(B, S, D)),
            "wq": _w((lambda *s: torch.randn(*s, dtype=torch.bfloat16) * 0.05)(D, H * Dh)),
            "wk": _w((lambda *s: torch.randn(*s, dtype=torch.bfloat16) * 0.05)(D, Dh)),
            "wv": _w((lambda *s: torch.randn(*s, dtype=torch.bfloat16) * 0.05)(D, Dh)),
            "wo": _w((lambda *s: torch.randn(*s, dtype=torch.bfloat16) * 0.05)(H * Dh, D)),
        }
    _A_in = _A_setup()

    def _B_setup():
        B, S, D, F = 1, 2048, 640, 1728
        return {
            "x":  _w((lambda *s: torch.randn(*s, dtype=torch.bfloat16) * 0.05)(B, S, D)),
            "w1": _w((lambda *s: torch.randn(*s, dtype=torch.bfloat16) * 3.2)(D, D) * (D ** -0.5)),
            "w2": _w((lambda *s: torch.randn(*s, dtype=torch.bfloat16) * 3.2)(D, D) * (D ** -0.5)),
            "w3": _w((lambda *s: torch.randn(*s, dtype=torch.bfloat16) * 3.2)(D, F) * (D ** -0.5)),
            "w4": _w((lambda *s: torch.randn(*s, dtype=torch.bfloat16) * 3.2)(F, D) * (F ** -0.5)),
        }
    _B_in = _B_setup()

    return {
        "A_x": _A_in["x"],
        "A_wq": _A_in["wq"],
        "A_wk": _A_in["wk"],
        "A_wv": _A_in["wv"],
        "A_wo": _A_in["wo"],
        "B_x": _B_in["x"],
        "B_w1": _B_in["w1"],
        "B_w2": _B_in["w2"],
        "B_w3": _B_in["w3"],
        "B_w4": _B_in["w4"],
    }

def reference(A_x, A_wq, A_wk, A_wv, A_wo, B_x, B_w1, B_w2, B_w3, B_w4):
    def _A_ref(x, wq, wk, wv, wo):
        B, S, D = x.shape
        H = 32
        Dh = D // H
        q = (lambda x, *d: x.permute(*d))((x @ wq).reshape(B, S, H, Dh), 0, 2, 1, 3)
        k = x @ wk
        v = x @ wv
        scores = torch.einsum("bhqd,bkd->bhqk", q, k) * (Dh ** -0.5)
        p = _softmax(scores, axis=-1)
        o = torch.einsum("bhqk,bkd->bhqd", p, v)
        return (lambda x, *d: x.permute(*d))(o, 0, 2, 1, 3).reshape(B, S, H * Dh) @ wo

    def _B_ref(x, w1, w2, w3, w4):
        B, S, D = x.shape
        h = _gelu(_layernorm(x, axis=-1) @ w1)
        c = D // 4
        g0 = _pad(h[:, :, 0*c:1*c], ((0, 0), (1, 0), (0, 0)))[:, :S, :]
        g1 = _pad(h[:, :, 1*c:2*c], ((0, 0), (0, 1), (0, 0)))[:, 1:, :]
        g2 = _pad(h[:, :, 2*c:3*c], ((0, 0), (2, 0), (0, 0)))[:, :S, :]
        g3 = _pad(h[:, :, 3*c:   ], ((0, 0), (0, 2), (0, 0)))[:, 2:, :]
        hs = torch.concatenate([g0, g1, g2, g3], axis=-1) @ w2
        x1 = x + hs
        h2 = _gelu(_layernorm(x1, axis=-1) @ w3) @ w4
        return x1 + h2

    x = A_x
    h = x + _A_ref(_layernorm(x, axis=-1), A_wq, A_wk, A_wv, A_wo)
    h2 = h + _B_ref(_layernorm(h, axis=-1), B_w1, B_w2, B_w3, B_w4)
    return h2
```

```python
import sys

NAME = "sequential_preLN__grouped_kv_mqa__mixer_s_mlp__prompt"

KA = dict(x=0, wq=8, wk=16, wv=24, wo=32, bx=40, w1=48, w2=56, w3=64, w4=72, out=80, dbg=88, ws=96)

S, D, F = 2048, 640, 1728
ACT_BYTES = S * D * 2
WS_Q = 0x0
WS_K = 0x300000
WS_V = 0x340000
WS_O = 0x400000
WS_H = 0x700000
WS_XB = 0xA00000
WS_HH = 0xD00000
WS_X1 = 0x1000000
WS_G = 0x1300000
KV_BYTES = 2048 * 32 * 2

QSCALE = 1.4426950408889634 / (20.0 ** 0.5)


def f32hex(x):
    import struct
    return "0x%08x" % struct.unpack("<I", struct.pack("<f", x))[0]


class Asm:
    def __init__(self):
        self.lines = []

    def __call__(self, s):
        for ln in s.strip("\n").split("\n"):
            self.lines.append("    " + ln.strip())

    def label(self, l):
        self.lines.append(l + ":")

    def raw(self, s):
        self.lines.append(s)

    def text(self):
        return "\n".join(self.lines) + "\n"


def srd(a, d, base, off, nbytes):
    if off:
        a(f"s_add_u32 s{d}, s{base}, {off}")
        a(f"s_addc_u32 s{d+1}, s{base+1}, 0")
    else:
        a(f"s_mov_b32 s{d}, s{base}")
        a(f"s_mov_b32 s{d+1}, s{base+1}")
    a(f"s_and_b32 s{d+1}, s{d+1}, 0xffff")
    a(f"s_mov_b32 s{d+2}, {nbytes}")
    a(f"s_mov_b32 s{d+3}, 0x00020000")


def kernel_header(a, name):
    a.raw(f".globl {name}")
    a.raw(".p2align 8")
    a.raw(f".type {name},@function")
    a.label(name)


def kernel_desc(a, name, vgpr=256, sgpr=102):
    a.raw(".p2align 6")
    a.raw(f".amdhsa_kernel {name}")
    a.raw(f"  .amdhsa_next_free_vgpr {vgpr}")
    a.raw(f"  .amdhsa_next_free_sgpr {sgpr}")
    a.raw(f"  .amdhsa_accum_offset {vgpr}")
    a.raw("  .amdhsa_group_segment_fixed_size 0")
    a.raw("  .amdhsa_kernarg_size 104")
    a.raw("  .amdhsa_user_sgpr_count 2")
    a.raw("  .amdhsa_user_sgpr_kernarg_segment_ptr 1")
    a.raw("  .amdhsa_system_sgpr_workgroup_id_x 1")
    a.raw(".end_amdhsa_kernel")


A_STRIDE = 1296
A_RES_BYTES = 32 * A_STRIDE
XS_STRIDE = 144
XS_BYTES = 32 * XS_STRIDE
WBUF = 64 * 256


def gelu_code(a, x, t0, t1):
    k = 2.0 * 0.7978845608028654 * 1.4426950408889634
    a(f"v_mul_f32 v{t0}, v{x}, v{x}")
    a(f"v_mul_f32 v{t0}, v{t0}, v{x}")
    a(f"v_mov_b32 v{t1}, {f32hex(0.044715)}")
    a(f"v_fma_f32 v{t0}, v{t0}, v{t1}, v{x}")
    a(f"v_mul_f32 v{t0}, {f32hex(-k)}, v{t0}")
    a(f"v_exp_f32 v{t0}, v{t0}")
    a("s_nop 0")
    a(f"v_add_f32 v{t0}, 1.0, v{t0}")
    a(f"v_rcp_f32 v{t0}, v{t0}")
    a("s_nop 0")
    a(f"v_mul_f32 v{x}, v{x}, v{t0}")


def gen_gemm(a, name, *, a_off, a_ptr, K, w_ptr, N, NB, ln, shift, resident, epi):
    lda = K * 2
    ldw = N * 2
    nwg = 64 * NB
    NC = K // 64
    DEPTH = 3
    kernel_header(a, name)
    a(f"s_cmp_ge_u32 s2, {nwg}")
    a(f"s_cbranch_scc1 {name}_end")
    a(f"s_load_dwordx2 s[4:5], s[0:1], {KA['ws']}")
    a(f"s_load_dwordx2 s[6:7], s[0:1], {w_ptr}")
    if a_ptr[0] == 'arg':
        a(f"s_load_dwordx2 s[34:35], s[0:1], {a_ptr[1]}")
    if epi == 'qkv':
        a(f"s_load_dwordx2 s[36:37], s[0:1], {KA['wk']}")
        a(f"s_load_dwordx2 s[38:39], s[0:1], {KA['wv']}")
    if epi == 'wo':
        a(f"s_load_dwordx2 s[36:37], s[0:1], {KA['x']}")
    if epi == 'w4':
        a(f"s_load_dwordx2 s[36:37], s[0:1], {KA['out']}")
    magic = (1 << 32) // NB + 1
    a(f"s_mul_hi_u32 s32, s2, {magic}")
    a(f"s_mul_i32 s33, s32, {NB}")
    a(f"s_sub_u32 s33, s2, s33")
    a("s_lshl_b32 s40, s32, 5")
    a("s_lshl_b32 s41, s33, 7")
    a("v_lshrrev_b32 v1, 6, v0")
    a("v_and_b32 v2, 63, v0")
    a("v_readfirstlane_b32 s42, v1")
    a("s_waitcnt lgkmcnt(0)")
    if a_ptr[0] == 'arg':
        srd(a, 8, 34, 0, S * lda)
    else:
        srd(a, 8, 4, a_ptr[1], S * lda)
    srd(a, 12, 6, 0, K * ldw)
    a("v_and_b32 v3, 31, v2")
    a("v_add_u32 v3, s40, v3")
    a("v_lshrrev_b32 v4, 5, v2")
    a("s_lshl_b32 s43, s42, 5")
    a("s_add_u32 s43, s43, s41")
    a("v_lshlrev_b32 v5, 2, v4")
    a("v_add_u32 v5, s43, v5")
    outN = {'qkv': D, 'wo': D, 'w1': D, 'w2': D, 'w3': F, 'w4': D}[epi]
    a(f"s_mov_b32 s44, {outN * 2}")
    a("v_mul_lo_u32 v6, v3, s44")
    a("v_lshlrev_b32 v7, 1, v5")
    a("v_add_u32 v6, v6, v7")
    nres = 0
    if epi == 'wo':
        srd(a, 20, 36, 0, ACT_BYTES)
        for g in range(4):
            a(f"buffer_load_dwordx2 v[{224+2*g}:{225+2*g}], v6, s[20:23], 0 offen offset:{16*g}")
        nres = 4
    if epi == 'w2':
        srd(a, 20, 4, WS_XB, ACT_BYTES)
        for g in range(4):
            a(f"buffer_load_dwordx2 v[{224+2*g}:{225+2*g}], v6, s[20:23], 0 offen offset:{16*g}")
        nres = 4
    if epi == 'w4':
        srd(a, 20, 4, WS_X1, ACT_BYTES)
        srd(a, 24, 4, WS_H, ACT_BYTES)
        for g in range(4):
            a(f"buffer_load_dwordx2 v[{224+2*g}:{225+2*g}], v6, s[20:23], 0 offen offset:{16*g}")
        for g in range(4):
            a(f"buffer_load_dwordx2 v[{232+2*g}:{233+2*g}], v6, s[24:27], 0 offen offset:{16*g}")
        nres = 8
    WL = A_RES_BYTES if resident else 2 * XS_BYTES
    if resident:
        a("v_lshrrev_b32 v8, 3, v0")
        a("v_and_b32 v9, 7, v0")
        a("v_add_u32 v10, s40, v8")
        a(f"s_mov_b32 s45, {lda}")
        a("v_mul_lo_u32 v10, v10, s45")
        a("v_lshl_add_u32 v10, v9, 4, v10")
        if shift:
            a("v_cmp_gt_u32 vcc, 4, v9")
            a(f"v_add_u32 v11, {(-lda) & 0xffffffff}, v10")
            a(f"v_add_u32 v12, {lda}, v10")
            a(f"v_add_u32 v13, {(-2*lda) & 0xffffffff}, v10")
            a(f"v_add_u32 v14, {2*lda}, v10")
            a("v_cndmask_b32 v15, v12, v11, vcc")
            a("v_cndmask_b32 v16, v14, v13, vcc")
            sel = {0: 11, 1: 11, 2: 15, 3: 12, 4: 12, 5: 13, 6: 13, 7: 16, 8: 14, 9: 14}
            for j in range(10):
                a(f"buffer_load_dwordx4 v[{64+4*j}:{67+4*j}], v{sel[j]}, s[8:11], 0 offen offset:{128*j}")
        else:
            for j in range(10):
                a(f"buffer_load_dwordx4 v[{64+4*j}:{67+4*j}], v10, s[8:11], 0 offen offset:{128*j}")
    else:
        a("v_lshrrev_b32 v8, 3, v0")
        a("v_and_b32 v9, 7, v0")
        a("v_add_u32 v10, s40, v8")
        a(f"s_mov_b32 s45, {lda}")
        a("v_mul_lo_u32 v10, v10, s45")
        a("v_lshl_add_u32 v10, v9, 4, v10")
        a(f"v_mul_u32_u24 v17, {XS_STRIDE}, v8")
        a("v_lshl_add_u32 v17, v9, 4, v17")
    a("v_lshrrev_b32 v18, 4, v0")
    a("v_and_b32 v19, 15, v0")
    a(f"s_mov_b32 s46, {ldw}")
    a("v_mul_lo_u32 v20, v18, s46")
    a("v_lshl_add_u32 v20, v19, 4, v20")
    a("s_lshl_b32 s47, s41, 1")
    a("v_add_u32 v20, s47, v20")
    a("v_lshrrev_b32 v21, 2, v19")
    a("v_and_b32 v22, 3, v18")
    a("v_xor_b32 v21, v21, v22")
    a("v_lshlrev_b32 v21, 6, v21")
    a("v_and_b32 v22, 3, v19")
    a("v_lshl_add_u32 v21, v22, 4, v21")
    a("v_lshl_add_u32 v21, v18, 8, v21")
    a(f"v_add_u32 v21, {WL}, v21")
    xs = A_STRIDE if resident else XS_STRIDE
    a("v_and_b32 v22, 31, v2")
    a(f"v_mul_u32_u24 v22, {xs}, v22")
    a("v_lshl_add_u32 v22, v4, 4, v22")
    a("v_and_b32 v23, 15, v2")
    a("v_lshrrev_b32 v23, 2, v23")
    a("v_lshl_add_u32 v24, v4, 3, v23")
    a("v_lshlrev_b32 v24, 8, v24")
    a("v_xor_b32 v25, s42, v23")
    a("v_lshl_add_u32 v24, v25, 6, v24")
    a("v_bfe_u32 v25, v2, 4, 1")
    a("v_lshl_add_u32 v24, v25, 5, v24")
    a("v_and_b32 v25, 3, v2")
    a("v_lshl_add_u32 v24, v25, 3, v24")
    a(f"v_add_u32 v24, {WL}, v24")

    for r in range(16):
        a(f"v_mov_b32 v{176+r}, 0")
    if epi == 'qkv':
        a("s_cmp_eq_u32 s33, 5")
        a(f"s_cbranch_scc1 {name}_kv")

    WR = 112

    def issue_chunk(c):
        slot = c % DEPTH
        n = 0
        if not resident:
            a(f"buffer_load_dwordx4 v[{WR+slot*20+16}:{WR+slot*20+19}], v10, s[8:11], 0 offen")
            a("v_add_u32 v10, 128, v10")
            n += 1
        for i in range(4):
            a(f"s_mov_b32 s48, {(c*64+16*i)*ldw}")
            a(f"buffer_load_dwordx4 v[{WR+slot*20+4*i}:{WR+slot*20+4*i+3}], v20, s[12:15], s48 offen")
            n += 1
        return n

    def write_chunk(c):
        slot = c % DEPTH
        buf = c & 1
        if not resident:
            a(f"ds_write_b128 v17, v[{WR+slot*20+16}:{WR+slot*20+19}] offset:{buf*XS_BYTES}")
        for i in range(4):
            a(f"ds_write_b128 v21, v[{WR+slot*20+4*i}:{WR+slot*20+4*i+3}] offset:{buf*WBUF+4096*i}")

    per = 4 if resident else 5

    def main_loop(issue, write, per, DEPTH, nwr):
        a(f"s_waitcnt vmcnt({per*(min(DEPTH,NC)-1)})")
        write(0)
        if DEPTH < NC:
            issue(DEPTH)
        a("s_waitcnt lgkmcnt(0)")
        a("s_barrier")
        for c in range(NC):
            buf = c & 1
            for kk in range(4):
                xo = (c*64 + kk*16)*2 if resident else buf*XS_BYTES + kk*32
                a(f"ds_read_b128 v[{192+4*kk}:{195+4*kk}], v22 offset:{xo}")
                a(f"ds_read_b64_tr_b16 v[{208+4*kk}:{209+4*kk}], v24 offset:{buf*WBUF+kk*4096}")
                a(f"ds_read_b64_tr_b16 v[{210+4*kk}:{211+4*kk}], v24 offset:{buf*WBUF+kk*4096+1024}")
            nw = 0
            if c + 1 < NC:
                outstanding = min(DEPTH, NC - (c+1)) - 1
                a(f"s_waitcnt vmcnt({per*outstanding})")
                write(c+1)
                nw = nwr
                if c + 1 + DEPTH < NC:
                    issue(c+1+DEPTH)
            for kk in range(4):
                a(f"s_waitcnt lgkmcnt({nw + 3*(3-kk)})")
                a(f"v_mfma_f32_32x32x16_bf16 v[176:191], v[{208+4*kk}:{211+4*kk}], v[{192+4*kk}:{195+4*kk}], v[176:191]")
            a("s_waitcnt lgkmcnt(0)")
            a("s_barrier")

    for c in range(min(DEPTH, NC)):
        issue_chunk(c)

    def ln_pass():
        a("v_mov_b32 v26, 0")
        for r in range(64, 104):
            a(f"v_lshlrev_b32 v28, 16, v{r}")
            a(f"v_and_b32 v29, 0xffff0000, v{r}")
            a("v_add_f32 v26, v26, v28")
            a("v_add_f32 v26, v26, v29")
        red8(26)
        a(f"v_mul_f32 v26, {f32hex(1.0/640)}, v26")
        a("v_mov_b32 v27, 0")
        for r in range(64, 104):
            a(f"v_lshlrev_b32 v28, 16, v{r}")
            a(f"v_and_b32 v29, 0xffff0000, v{r}")
            a("v_sub_f32 v28, v28, v26")
            a("v_sub_f32 v29, v29, v26")
            a("v_fmac_f32 v27, v28, v28")
            a("v_fmac_f32 v27, v29, v29")
        red8(27)
        a(f"v_mul_f32 v27, {f32hex(1.0/640)}, v27")
        a(f"v_add_f32 v27, {f32hex(1e-5)}, v27")
        a("v_rsq_f32 v27, v27")
        a("s_nop 0")
        a("v_mul_f32 v26, v26, v27")
        a("v_sub_f32 v26, 0, v26")
        for r in range(64, 104):
            a(f"v_lshlrev_b32 v28, 16, v{r}")
            a(f"v_and_b32 v29, 0xffff0000, v{r}")
            a("v_fma_f32 v28, v28, v27, v26")
            a("v_fma_f32 v29, v29, v27, v26")
            a(f"v_cvt_pk_bf16_f32 v{r}, v28, v29")

    def red8(v):
        a("s_nop 1")
        a(f"v_add_f32_dpp v{v}, v{v}, v{v} quad_perm:[1,0,3,2] row_mask:0xf bank_mask:0xf")
        a("s_nop 1")
        a(f"v_add_f32_dpp v{v}, v{v}, v{v} quad_perm:[2,3,0,1] row_mask:0xf bank_mask:0xf")
        a("s_nop 1")
        a(f"v_add_f32_dpp v{v}, v{v}, v{v} row_half_mirror row_mask:0xf bank_mask:0xf")

    def a_prologue(nloads_after):
        a(f"s_waitcnt vmcnt({nloads_after})")
        for p in range(ln):
            ln_pass()
            if p == 0 and ln == 2:
                a("s_cmp_lg_u32 s33, 0")
                a(f"s_cbranch_scc1 {name}_noxb")
                srd(a, 28, 4, WS_XB, ACT_BYTES)
                for j in range(10):
                    a(f"buffer_store_dwordx4 v[{64+4*j}:{67+4*j}], v10, s[28:31], 0 offen offset:{128*j}")
                a.label(f"{name}_noxb")
                a("s_nop 1")
        a(f"v_mul_u32_u24 v28, {A_STRIDE}, v8")
        a("v_lshl_add_u32 v28, v9, 4, v28")
        for j in range(10):
            a(f"ds_write_b128 v28, v[{64+4*j}:{67+4*j}] offset:{128*j}")

    if resident:
        a_prologue(per * min(DEPTH, NC))
        if ln == 2:
            a("s_waitcnt vmcnt(0)")
    main_loop(issue_chunk, write_chunk, per, DEPTH, per)

    a("s_nop 15")
    a("s_nop 7")
    a("s_waitcnt vmcnt(0)")
    acc = 176

    def store4(srd_o):
        for g in range(4):
            a(f"v_cvt_pk_bf16_f32 v{64+2*g}, v{acc+4*g}, v{acc+4*g+1}")
            a(f"v_cvt_pk_bf16_f32 v{65+2*g}, v{acc+4*g+2}, v{acc+4*g+3}")
        for g in range(4):
            a(f"buffer_store_dwordx2 v[{64+2*g}:{65+2*g}], v6, s[{srd_o}:{srd_o+3}], 0 offen offset:{16*g}")

    def add_res(base):
        for g in range(4):
            for h in range(2):
                r = base + 2*g + h
                a(f"v_lshlrev_b32 v28, 16, v{r}")
                a(f"v_and_b32 v29, 0xffff0000, v{r}")
                a(f"v_add_f32 v{acc+4*g+2*h}, v{acc+4*g+2*h}, v28")
                a(f"v_add_f32 v{acc+4*g+2*h+1}, v{acc+4*g+2*h+1}, v29")

    if epi == 'qkv':
        srd(a, 16, 4, WS_Q, ACT_BYTES)
        for r in range(16):
            a(f"v_mul_f32 v{acc+r}, {f32hex(QSCALE)}, v{acc+r}")
        store4(16)
    elif epi == 'wo':
        srd(a, 16, 4, WS_H, ACT_BYTES)
        add_res(224)
        store4(16)
    elif epi == 'w1':
        srd(a, 16, 4, WS_HH, ACT_BYTES)
        for r in range(16):
            gelu_code(a, acc+r, 28, 29)
        store4(16)
    elif epi == 'w2':
        srd(a, 16, 4, WS_X1, ACT_BYTES)
        add_res(224)
        store4(16)
    elif epi == 'w3':
        srd(a, 16, 4, WS_G, S * F * 2)
        a(f"s_cmp_ge_u32 s43, {F}")
        a(f"s_cbranch_scc1 {name}_end")
        for r in range(16):
            gelu_code(a, acc+r, 28, 29)
        store4(16)
    elif epi == 'w4':
        srd(a, 16, 36, 0, ACT_BYTES)
        add_res(224)
        for g in range(4):
            for h in range(2):
                a(f"v_cvt_pk_bf16_f32 v28, v{acc+4*g+2*h}, v{acc+4*g+2*h+1}")
                a(f"v_lshlrev_b32 v{acc+4*g+2*h}, 16, v28")
                a(f"v_and_b32 v{acc+4*g+2*h+1}, 0xffff0000, v28")
        add_res(232)
        store4(16)
    a(f"s_branch {name}_end")

    if epi == 'qkv':
        a.label(f"{name}_kv")
        srd(a, 12, 36, 0, 640 * 40)
        srd(a, 16, 38, 0, 640 * 40)
        for j in range(5):
            a(f"v_add_u32 v26, {256*j}, v0")
            a("v_cmp_le_u32 vcc, 640, v26")
            a("v_subrev_u32 v27, 640, v26")
            a("s_nop 1")
            a("v_cndmask_b32 v27, v26, v27, vcc")
            a("v_cndmask_b32 v28, 0, 1, vcc")
            a(f"s_mov_b32 s48, 429496730")
            a("v_mul_hi_u32 v29, v27, s48")
            a("v_mul_u32_u24 v30, 10, v29")
            a("v_sub_u32 v30, v27, v30")
            a("v_and_b32 v31, 3, v29")
            a("v_xor_b32 v28, v28, v31")
            a("v_lshlrev_b32 v28, 6, v28")
            a("v_lshl_add_u32 v28, v30, 2, v28")
            a("v_lshl_add_u32 v28, v29, 8, v28")
            a(f"v_add_u32 v{40+j}, {WL}, v28")
            a(f"v_lshlrev_b32 v{48+j}, 2, v27")
        KD = 3

        def kv_issue(c):
            slot = c % KD
            base = WR + slot * 8
            a(f"s_mov_b32 s48, {c*2560}")
            a(f"buffer_load_dword v{base+0}, v48, s[12:15], s48 offen")
            a(f"buffer_load_dword v{base+1}, v49, s[12:15], s48 offen")
            a(f"buffer_load_dword v{base+2}, v50, s[12:15], s48 offen")
            a(f"buffer_load_dword v{base+3}, v50, s[16:19], s48 offen")
            a(f"buffer_load_dword v{base+4}, v51, s[16:19], s48 offen")
            a(f"buffer_load_dword v{base+5}, v52, s[16:19], s48 offen")

        def kv_write(c):
            slot = c % KD
            base = WR + slot * 8
            buf = c & 1
            a("v_cmp_gt_u32 vcc, 128, v0")
            a("s_nop 1")
            a(f"v_cndmask_b32 v{base+2}, v{base+3}, v{base+2}, vcc")
            for j, r in enumerate((0, 1, 2, 4, 5)):
                a(f"ds_write_b32 v{40+j}, v{base+r} offset:{buf*WBUF}")

        for c in range(KD):
            kv_issue(c)
        a("v_mov_b32 v60, 0")
        a("v_mov_b32 v61, 0")
        a("v_mov_b32 v62, 0")
        a("v_mov_b32 v63, 0")
        a("v_lshlrev_b32 v28, 4, v0")
        a(f"v_add_u32 v28, {WL}, v28")
        for j in range(8):
            a(f"ds_write_b128 v28, v[60:63] offset:{4096*j}")
        a_prologue(6 * KD)
        a("s_waitcnt lgkmcnt(0)")
        a("s_barrier")
        main_loop(kv_issue, kv_write, 6, KD, 5)
        a("s_nop 15")
        a("s_nop 7")
        a("s_cmp_ge_u32 s42, 2")
        a(f"s_cbranch_scc1 {name}_end")
        a("s_cmp_eq_u32 s42, 1")
        a(f"s_cbranch_scc1 {name}_vout")
        srd(a, 16, 4, WS_K, KV_BYTES)
        a("v_lshrrev_b32 v28, 5, v3")
        a("v_lshlrev_b32 v28, 11, v28")
        a("v_and_b32 v29, 31, v3")
        a("v_lshl_add_u32 v28, v29, 4, v28")
        a("v_lshl_add_u32 v28, v4, 3, v28")
        for g in range(4):
            a(f"v_cvt_pk_bf16_f32 v{64+2*g}, v{acc+4*g}, v{acc+4*g+1}")
            a(f"v_cvt_pk_bf16_f32 v{65+2*g}, v{acc+4*g+2}, v{acc+4*g+3}")
        for g in range(4):
            off = (g >> 1) * 1024 + (g & 1) * 512
            a(f"buffer_store_dwordx2 v[{64+2*g}:{65+2*g}], v28, s[16:19], 0 offen offset:{off}")
        a(f"s_branch {name}_end")
        a.label(f"{name}_vout")
        srd(a, 16, 4, WS_V, KV_BYTES)
        a("v_lshrrev_b32 v28, 4, v3")
        a("v_lshlrev_b32 v28, 10, v28")
        a("v_bfe_u32 v29, v3, 2, 1")
        a("v_lshl_add_u32 v28, v29, 9, v28")
        a("v_and_b32 v29, 3, v3")
        a("v_bfe_u32 v30, v3, 3, 1")
        a("v_lshl_add_u32 v29, v30, 2, v29")
        a("v_lshl_add_u32 v28, v29, 1, v28")
        a("v_lshl_add_u32 v28, v4, 6, v28")
        a("v_cmp_eq_u32 vcc, 1, v4")
        a("s_nop 1")
        a(f"v_cndmask_b32 v{acc+8}, v{acc+8}, 1.0, vcc")
        for r in range(16):
            d = 8 * (r >> 2) + (r & 3)
            a(f"v_cvt_pk_bf16_f32 v29, v{acc+r}, v{acc+r}")
            a(f"buffer_store_short v29, v28, s[16:19], 0 offen offset:{d*16}")
    a.label(f"{name}_end")
    a("s_endpgm")


def gen_attn(a, name):
    kernel_header(a, name)
    a("s_cmp_ge_u32 s2, 256")
    a(f"s_cbranch_scc1 {name}_end")
    a(f"s_load_dwordx2 s[4:5], s[0:1], {KA['ws']}")
    a("v_lshrrev_b32 v1, 6, v0")
    a("v_and_b32 v2, 63, v0")
    a("v_readfirstlane_b32 s42, v1")
    a("s_lshr_b32 s32, s2, 2")
    a("s_and_b32 s33, s2, 3")
    a("s_lshl_b32 s33, s33, 3")
    a("s_add_u32 s33, s33, s42")
    a("s_waitcnt lgkmcnt(0)")
    srd(a, 8, 4, WS_Q, ACT_BYTES)
    srd(a, 12, 4, WS_K, KV_BYTES)
    srd(a, 16, 4, WS_V, KV_BYTES)
    srd(a, 20, 4, WS_O, ACT_BYTES)
    a("v_lshlrev_b32 v3, 4, v0")
    a("buffer_load_dwordx4 v[88:91], v3, s[12:15], 0 offen")
    a("buffer_load_dwordx4 v[92:95], v3, s[16:19], 0 offen")
    a("v_and_b32 v4, 31, v2")
    a("v_lshrrev_b32 v5, 5, v2")
    a("s_lshl_b32 s34, s32, 5")
    a("v_add_u32 v6, s34, v4")
    a("s_movk_i32 s35, 1280")
    a("v_mul_lo_u32 v6, v6, s35")
    a("s_mul_i32 s36, s33, 40")
    a("v_add_u32 v6, s36, v6")
    a("v_lshl_add_u32 v7, v5, 4, v6")
    a("buffer_load_dwordx2 v[8:9], v7, s[8:11], 0 offen")
    a("buffer_load_dwordx2 v[10:11], v7, s[8:11], 0 offen offset:8")
    a("buffer_load_dwordx2 v[12:13], v6, s[8:11], 0 offen offset:32")
    a("v_mov_b32 v14, 0")
    a("v_mov_b32 v15, 0")
    for r in range(16):
        a(f"v_mov_b32 v{32+r}, 0")
        a(f"v_mov_b32 v{48+r}, 0")
    a("v_mov_b32 v96, 0xff800000")
    a("v_lshlrev_b32 v97, 4, v2")
    a("s_waitcnt vmcnt(0)")
    a("v_cmp_gt_u32 vcc, 32, v2")
    a("s_nop 1")
    a("v_cndmask_b32 v12, 0, v12, vcc")
    a("v_cndmask_b32 v13, 0, v13, vcc")
    a("ds_write_b128 v3, v[88:91]")
    a("ds_write_b128 v3, v[92:95] offset:8192")
    a("s_waitcnt lgkmcnt(0)")
    a("s_barrier")
    NCH = 16
    for c in range(NCH):
        buf = (c & 1) * 16384
        if c + 1 < NCH:
            a(f"s_mov_b32 s48, {(c+1)*8192}")
            a("buffer_load_dwordx4 v[88:91], v3, s[12:15], s48 offen")
            a("buffer_load_dwordx4 v[92:95], v3, s[16:19], s48 offen")
        for t in range(4):
            lab = f"{name}_c{c}t{t}"
            a(f"ds_read_b128 v[72:75], v97 offset:{buf + t*2048}")
            a(f"ds_read_b128 v[76:79], v97 offset:{buf + t*2048 + 1024}")
            a(f"ds_read_b128 v[80:83], v97 offset:{buf + 8192 + t*2048}")
            a(f"ds_read_b128 v[84:87], v97 offset:{buf + 8192 + t*2048 + 1024}")
            a("s_waitcnt lgkmcnt(3)")
            a("v_mfma_f32_32x32x16_bf16 v[16:31], v[72:75], v[8:11], v[32:47]")
            a("s_waitcnt lgkmcnt(2)")
            a("v_mfma_f32_32x32x16_bf16 v[16:31], v[76:79], v[12:15], v[16:31]")
            a("s_nop 15")
            a("s_nop 3")
            a("v_max3_f32 v98, v16, v17, v18")
            for r in range(19, 31, 2):
                a(f"v_max3_f32 v98, v98, v{r}, v{r+1}")
            a("v_max_f32 v98, v98, v31")
            a("v_mov_b32 v99, v98")
            a("s_nop 1")
            a("v_permlane32_swap_b32 v98, v99")
            a("s_nop 1")
            a("v_max_f32 v98, v98, v99")
            a("v_cmp_gt_f32 vcc, v98, v96")
            a("s_nop 1")
            a(f"s_cbranch_vccz {lab}_skip")
            a("v_max_f32 v98, v98, v96")
            a("v_sub_f32 v99, 0, v98")
            a("v_exp_f32 v99, v99")
            for r in range(16):
                a(f"v_sub_f32 v{16+r}, v{16+r}, v98")
                a(f"v_sub_f32 v{32+r}, v{32+r}, v98")
            for r in range(16):
                a(f"v_mul_f32 v{48+r}, v{48+r}, v99")
            a("v_mov_b32 v96, 0")
            a.label(f"{lab}_skip")
            for r in range(16):
                a(f"v_exp_f32 v{16+r}, v{16+r}")
            a("s_nop 0")
            for r in range(8):
                a(f"v_cvt_pk_bf16_f32 v{64+r}, v{16+2*r}, v{17+2*r}")
            a("s_waitcnt lgkmcnt(0)")
            a("s_nop 1")
            a("v_mfma_f32_32x32x16_bf16 v[48:63], v[80:83], v[64:67], v[48:63]")
            a("v_mfma_f32_32x32x16_bf16 v[48:63], v[84:87], v[68:71], v[48:63]")
        if c + 1 < NCH:
            nb = ((c + 1) & 1) * 16384
            a("s_waitcnt vmcnt(0)")
            a(f"ds_write_b128 v3, v[88:91] offset:{nb}")
            a(f"ds_write_b128 v3, v[92:95] offset:{nb + 8192}")
            a("s_waitcnt lgkmcnt(0)")
            a("s_barrier")
    a("s_nop 15")
    a("s_nop 7")
    a("v_mov_b32 v98, v56")
    a("v_mov_b32 v99, v56")
    a("s_nop 1")
    a("v_permlane32_swap_b32 v98, v99")
    a("s_nop 1")
    a("v_rcp_f32 v99, v99")
    a("s_nop 0")
    for r in range(12):
        a(f"v_mul_f32 v{48+r}, v{48+r}, v99")
    for g in range(3):
        a(f"v_cvt_pk_bf16_f32 v{64+2*g}, v{48+4*g}, v{49+4*g}")
        a(f"v_cvt_pk_bf16_f32 v{65+2*g}, v{50+4*g}, v{51+4*g}")
    a("v_lshl_add_u32 v7, v5, 3, v6")
    a("buffer_store_dwordx2 v[64:65], v7, s[20:23], 0 offen")
    a("buffer_store_dwordx2 v[66:67], v7, s[20:23], 0 offen offset:16")
    a("v_cmp_gt_u32 vcc, 32, v2")
    a("s_and_saveexec_b64 s[50:51], vcc")
    a("buffer_store_dwordx2 v[68:69], v7, s[20:23], 0 offen offset:32")
    a.label(f"{name}_end")
    a("s_endpgm")


def main():
    a = Asm()
    hdr = open("cdna_kernels/%s.s.ref" % NAME).read().split("\n")
    for ln in hdr:
        if ln.startswith("; Override launch"):
            break
        a.raw(ln)
    kernels = [
        ("k1_qkv_kernel", 64 * 6, 256, 74240),
        ("k2_attn_kernel", 256, 512, 32768),
        ("k3_wo_kernel", 320, 256, 74240),
        ("k4_w1_kernel", 320, 256, 74240),
        ("k5_w2_kernel", 320, 256, 74240),
        ("k6_w3_kernel", 64 * 14, 256, 74240),
        ("k7_w4_kernel", 320, 256, 2 * XS_BYTES + 2 * WBUF),
    ]
    for k, g, b, l in kernels:
        a.raw(f"; @launch kernel={k} grid=({g},1,1) block=({b},1,1) lds={l}")
    a.raw('.amdgcn_target "amdgcn-amd-amdhsa--gfx950"')
    a.raw(".text")
    gen_gemm(a, "k1_qkv_kernel", a_off=0, a_ptr=('arg', KA['x']), K=640, w_ptr=KA['wq'], N=640, NB=6, ln=1, shift=False, resident=True, epi='qkv')
    gen_attn(a, "k2_attn_kernel")
    gen_gemm(a, "k3_wo_kernel", a_off=0, a_ptr=('ws', WS_O), K=640, w_ptr=KA['wo'], N=640, NB=5, ln=0, shift=False, resident=True, epi='wo')
    gen_gemm(a, "k4_w1_kernel", a_off=0, a_ptr=('ws', WS_H), K=640, w_ptr=KA['w1'], N=640, NB=5, ln=2, shift=False, resident=True, epi='w1')
    gen_gemm(a, "k5_w2_kernel", a_off=0, a_ptr=('ws', WS_HH), K=640, w_ptr=KA['w2'], N=640, NB=5, ln=0, shift=True, resident=True, epi='w2')
    gen_gemm(a, "k6_w3_kernel", a_off=0, a_ptr=('ws', WS_X1), K=640, w_ptr=KA['w3'], N=F, NB=14, ln=1, shift=False, resident=True, epi='w3')
    gen_gemm(a, "k7_w4_kernel", a_off=0, a_ptr=('ws', WS_G), K=F, w_ptr=KA['w4'], N=640, NB=5, ln=0, shift=False, resident=False, epi='w4')
    a.raw('.section .rodata,"a"')
    for k, g, b, l in kernels:
        kernel_desc(a, k)
    open("cdna_kernels/%s.s" % NAME, "w").write(a.text())


if __name__ == "__main__":
    main()
```

```python
import sys, os, struct

NAME = "sequential_preLN__grouped_kv_mqa__mixer_s_mlp__prompt"
KA = dict(x=0, wq=8, wk=16, wv=24, wo=32, bx=40, w1=48, w2=56, w3=64, w4=72, out=80, dbg=88, ws=96)
S, D, F = 2048, 640, 1728
ACT_BYTES = S * D * 2
WS_Q = 0x0
WS_K = 0x300000
WS_V = 0x340000
WS_ST = 0x380000
WS_O = 0x400000
WS_H = 0x700000
WS_HH = 0xD00000
WS_X1 = 0x1000000
WS_G = 0x1300000
KV_BYTES = 2048 * 32 * 2
QSCALE = 1.4426950408889634 / (20.0 ** 0.5)
ONES_BF16 = 0x3f803f80


def f32hex(x):
    return "0x%08x" % struct.unpack("<I", struct.pack("<f", x))[0]


class Asm:
    def __init__(self):
        self.lines = []

    def __call__(self, s):
        for ln in s.strip("\n").split("\n"):
            self.lines.append("    " + ln.strip())

    def label(self, l):
        self.lines.append(l + ":")

    def raw(self, s):
        self.lines.append(s)

    def text(self):
        return "\n".join(self.lines) + "\n"


def srd(a, d, base, off, nbytes):
    if off:
        a(f"s_add_u32 s{d}, s{base}, {off}")
        a(f"s_addc_u32 s{d+1}, s{base+1}, 0")
    else:
        a(f"s_mov_b32 s{d}, s{base}")
        a(f"s_mov_b32 s{d+1}, s{base+1}")
    a(f"s_and_b32 s{d+1}, s{d+1}, 0xffff")
    a(f"s_mov_b32 s{d+2}, {nbytes}")
    a(f"s_mov_b32 s{d+3}, 0x00020000")


def kernel_header(a, name):
    a.raw(f".globl {name}")
    a.raw(".p2align 8")
    a.raw(f".type {name},@function")
    a.label(name)


def kernel_desc(a, name, vgpr=256, sgpr=102):
    a.raw(".p2align 6")
    a.raw(f".amdhsa_kernel {name}")
    a.raw(f"  .amdhsa_next_free_vgpr {vgpr}")
    a.raw(f"  .amdhsa_next_free_sgpr {sgpr}")
    a.raw(f"  .amdhsa_accum_offset {vgpr}")
    a.raw("  .amdhsa_group_segment_fixed_size 0")
    a.raw("  .amdhsa_kernarg_size 104")
    a.raw("  .amdhsa_user_sgpr_count 2")
    a.raw("  .amdhsa_user_sgpr_kernarg_segment_ptr 1")
    a.raw("  .amdhsa_system_sgpr_workgroup_id_x 1")
    a.raw(".end_amdhsa_kernel")


XS_STRIDE = 144


def gelu_code(a, x, t0, t1):
    k = 2.0 * 0.7978845608028654 * 1.4426950408889634
    a(f"v_mul_f32 v{t0}, v{x}, v{x}")
    a(f"v_fma_f32 v{t0}, v{t0}, v{t1}, 1.0")
    a(f"v_mul_f32 v{t0}, v{t0}, v{x}")
    a(f"v_mul_f32 v{t0}, {f32hex(-k)}, v{t0}")
    a(f"v_exp_f32 v{t0}, v{t0}")
    a("s_nop 0")
    a(f"v_add_f32 v{t0}, 1.0, v{t0}")
    a(f"v_rcp_f32 v{t0}, v{t0}")
    a("s_nop 0")
    a(f"v_mul_f32 v{x}, v{x}, v{t0}")


def gemm_lds(BN, R):
    nwp = (64 * (BN * 2 // 16) + 255) // 256 * 256
    return R * (8192 + nwp * 16)


def gen_gemm(a, name, *, a_ptr, K, w_ptr, N, BN, NSTRIDE, NB, WM, WN, R, ln, shift, epi):
    STAMP = os.environ.get("STAMP", "")
    nst = [0]
    def stamp():
        if STAMP != name:
            return
        a(f"s_memtime s[{80+2*nst[0]}:{81+2*nst[0]}]")
        nst[0] += 1
    def stamp_out():
        if STAMP != name:
            return
        a("s_waitcnt lgkmcnt(0)")
        a(f"s_load_dwordx2 s[96:97], s[0:1], {KA['dbg']}")
        a("s_waitcnt lgkmcnt(0)")
        srd(a, 92, 96, 0, 256)
        a("s_cmp_lg_u32 s2, 37")
        a(f"s_cbranch_scc1 {name}_nost2")
        a("s_cmp_lg_u32 s42, 0")
        a(f"s_cbranch_scc1 {name}_nost2")
        a("v_mov_b32 v50, 0")
        for i in range(nst[0]):
            a(f"v_mov_b32 v51, s{80+2*i}")
            a(f"buffer_store_dword v51, v50, s[92:95], 0 offen offset:{4*i}")
        a.label(f"{name}_nost2")
    lda = K * 2
    ldw = N * 2
    nbk = NB + (1 if epi == 'qkv' else 0)
    nwg = 32 * nbk
    NC = K // 64
    MT = 4 // WM
    NT = BN // 16 // WN
    WROW = BN * 2
    PPR = BN * 2 // 16
    NWP = 64 * PPR
    NW = (NWP + 255) // 256
    SLOTB = 8192 + NW * 4096
    PER = 2 + NW
    ACC = 72
    NACC = 4 * MT * NT
    FR = ACC + NACC
    assert FR + 8 * (MT + NT) <= 236
    CS = 40
    kernel_header(a, name)
    a(f"s_cmp_ge_u32 s2, {nwg}")
    a(f"s_cbranch_scc1 {name}_end")
    stamp()
    a(f"s_load_dwordx2 s[4:5], s[0:1], {KA['ws']}")
    a(f"s_load_dwordx2 s[6:7], s[0:1], {w_ptr}")
    if a_ptr[0] == 'arg':
        a(f"s_load_dwordx2 s[34:35], s[0:1], {a_ptr[1]}")
    if epi == 'qkv':
        a(f"s_load_dwordx2 s[36:37], s[0:1], {KA['wk']}")
        a(f"s_load_dwordx2 s[38:39], s[0:1], {KA['wv']}")
    if epi == 'wo':
        a(f"s_load_dwordx2 s[36:37], s[0:1], {KA['x']}")
    if epi == 'w4':
        a(f"s_load_dwordx2 s[36:37], s[0:1], {KA['out']}")
    magic = (1 << 32) // nbk + 1
    a(f"s_mul_hi_u32 s32, s2, {magic}")
    a(f"s_mul_i32 s33, s32, {nbk}")
    a(f"s_sub_u32 s33, s2, s33")
    a("s_lshl_b32 s40, s32, 6")
    a(f"s_mul_i32 s41, s33, {NSTRIDE}")
    a("v_lshrrev_b32 v1, 6, v0")
    a("v_and_b32 v2, 63, v0")
    a("v_readfirstlane_b32 s42, v1")
    a("v_lshrrev_b32 v8, 3, v2")
    a("v_and_b32 v9, 7, v2")
    a("v_xor_b32 v9, v9, v8")
    a("s_lshl_b32 s43, s42, 4")
    a("s_add_u32 s43, s43, s40")
    a("v_add_u32 v10, s43, v8")
    a(f"s_mov_b32 s45, {lda}")
    a("v_mul_lo_u32 v10, v10, s45")
    a("v_lshl_add_u32 v10, v9, 4, v10")
    a(f"v_add_u32 v11, {8*lda}, v10")
    is_kv = None
    a(f"s_mov_b32 s46, {ldw}")
    a(f"s_mov_b32 s48, {(1 << 32) // PPR + 1}")
    a("s_lshl_b32 s47, s41, 1")
    a(f"s_mul_i32 s44, s42, {NW*64}")
    for i in range(NW):
        a(f"v_add_u32 v50, s44, v2")
        if i:
            a(f"v_add_u32 v50, {64*i}, v50")
        a("v_mul_hi_u32 v51, v50, s48")
        a(f"v_mul_u32_u24 v52, {PPR}, v51")
        a("v_sub_u32 v52, v50, v52")
        a("v_mul_lo_u32 v53, v51, s46")
        a("v_lshl_add_u32 v53, v52, 4, v53")
        a(f"v_add_u32 v{240+i}, s47, v53")
        if NWP % 256:
            a(f"v_mov_b32 v53, 0x7ffffff0")
            a(f"v_cmp_le_u32 vcc, {NWP}, v50")
            a("s_nop 1")
            a(f"v_cndmask_b32 v{240+i}, v{240+i}, v53, vcc")
    a("s_waitcnt lgkmcnt(0)")
    if a_ptr[0] == 'arg':
        srd(a, 8, 34, 0, S * lda)
    else:
        srd(a, 8, 4, a_ptr[1], S * lda)
    srd(a, 12, 6, 0, K * ldw)
    if epi == 'qkv':
        a(f"s_cmp_eq_u32 s33, {NB}")
        a(f"s_cbranch_scc0 {name}_notkv")
        srd(a, 12, 36, 0, 640 * 40)
        srd(a, 16, 38, 0, 640 * 40)
        a.label(f"{name}_notkv")
    a("s_mov_b32 s49, 0")
    a("s_mov_b32 s50, 0")
    a("s_mov_b32 s60, 0")
    a("s_mov_b32 s62, 0")
    a("s_mov_b32 s63, 0")
    a("s_lshl_b32 s64, s42, 11")
    a(f"s_mul_i32 s65, s42, {NW*1024}")
    a("s_add_u32 s65, s65, 8192")

    def issue(tag):
        a(f"s_cmp_lt_u32 s60, {NC}")
        a("s_cselect_b32 s61, s62, 0x7ffffff0")
        a("s_add_u32 s60, s60, 1")
        a("s_add_u32 s62, s62, 128")
        if shift:
            a("v_add_u32 v12, s50, v9")
            a(f"v_mov_b32 v13, {(-lda) & 0xffffffff}")
            a("v_cmp_le_u32 vcc, 20, v12")
            a(f"v_mov_b32 v14, {lda}")
            a("v_cndmask_b32 v13, v13, v14, vcc")
            a("v_cmp_le_u32 vcc, 40, v12")
            a(f"v_mov_b32 v14, {(-2*lda) & 0xffffffff}")
            a("v_cndmask_b32 v13, v13, v14, vcc")
            a("v_cmp_le_u32 vcc, 60, v12")
            a(f"v_mov_b32 v14, {2*lda}")
            a("v_cndmask_b32 v13, v13, v14, vcc")
            a("v_add_u32 v14, v13, v10")
            a("v_add_u32 v15, v13, v11")
            a("s_add_u32 s50, s50, 8")
            x0, x1 = 14, 15
        else:
            x0, x1 = 10, 11
        a("s_add_u32 m0, s63, s64")
        a("s_nop 0")
        a(f"buffer_load_dwordx4 v{x0}, s[8:11], s61 offen lds")
        a("s_add_u32 m0, m0, 1024")
        a("s_nop 0")
        a(f"buffer_load_dwordx4 v{x1}, s[8:11], s61 offen lds")
        a("s_add_u32 m0, s63, s65")
        for i in range(NW):
            a("s_nop 0")
            a(f"buffer_load_dwordx4 v{240+i}, s[12:15], s49 offen lds")
            if i + 1 < NW:
                a("s_add_u32 m0, m0, 1024")
        a(f"s_add_u32 s49, s49, {64*ldw}")
        a(f"s_add_u32 s63, s63, {SLOTB}")
        a(f"s_cmp_eq_u32 s63, {R*SLOTB}")
        a("s_cselect_b32 s63, 0, s63")

    for c in range(R - 1):
        issue(c)
    stamp()
    a(f"s_lshr_b32 s53, s42, {(WN-1).bit_length()}")
    a(f"s_and_b32 s54, s42, {WN-1}")
    a("v_and_b32 v3, 15, v2")
    a("v_lshrrev_b32 v4, 4, v2")
    a("v_and_b32 v22, 7, v3")
    a("v_xor_b32 v22, v22, v4")
    a("v_lshlrev_b32 v22, 4, v22")
    a("v_lshl_add_u32 v22, v3, 7, v22")
    a(f"s_mul_i32 s55, s53, {MT*2048}")
    a("v_add_u32 v22, s55, v22")
    a("v_xor_b32 v23, 64, v22")
    a("v_lshrrev_b32 v24, 2, v3")
    a("v_lshl_add_u32 v24, v4, 3, v24")
    a(f"v_mul_u32_u24 v24, {WROW}, v24")
    a("v_and_b32 v25, 3, v2")
    a("v_lshl_add_u32 v24, v25, 3, v24")
    a(f"s_mul_i32 s55, s54, {NT*32}")
    a(f"s_add_u32 s55, s55, 8192")
    a("v_add_u32 v24, s55, v24")
    a(f"s_mul_i32 s55, s53, {MT*16}")
    a("s_add_u32 s55, s55, s40")
    a("v_add_u32 v5, s55, v3")
    a(f"s_mul_i32 s56, s54, {NT*16}")
    a("s_add_u32 s56, s56, s41")
    a("v_lshl_add_u32 v6, v4, 2, s56")
    outN = F if epi == 'w3' else D
    a(f"s_mov_b32 s44, {outN * 2}")
    a("v_mul_lo_u32 v7, v5, s44")
    a("v_lshl_add_u32 v7, v6, 1, v7")
    a(f"v_add_u32 v16, {16*outN*2}, v7")
    for r in range(NACC):
        a(f"v_mov_b32 v{ACC+r}, 0")
    for i in range(MT):
        a(f"v_mov_b32 v{60+i}, 0")
        a(f"v_mov_b32 v{62+i}, 0")
    a(f"v_mov_b32 v64, 0x{ONES_BF16:08x}")
    if ln:
        for j in range(NT):
            a(f"v_mov_b32 v{CS+j}, 0")
    a("s_mov_b32 s66, 0")
    a(f"s_mov_b32 s51, {NC}")
    if epi == 'qkv':
        a(f"s_cmp_eq_u32 s33, {NB}")
        a(f"s_cbranch_scc1 {name}_kv")

    def loop(tag, issue_fn, per, NT=NT, woff=None):
        if woff is None:
            woff = lambda ks, j, h: ks*32*WROW + h*4*WROW + j*32
        a.label(f"{name}_{tag}loop")
        a(f"s_waitcnt vmcnt({per*(R-2)})")
        a("s_barrier")
        a("v_add_u32 v26, s66, v22")
        a("v_add_u32 v27, s66, v23")
        a("v_add_u32 v28, s66, v24")
        FS = 4 * (MT + NT)
        for ks in range(2):
            fb = FR + ks * FS
            for i in range(MT):
                a(f"ds_read_b128 v[{fb+4*i}:{fb+4*i+3}], v{26+ks} offset:{i*2048}")
            wr = fb + 4 * MT
            for j in range(NT):
                a(f"ds_read_b64_tr_b16 v[{wr+4*j}:{wr+4*j+1}], v28 offset:{woff(ks, j, 0)}")
                a(f"ds_read_b64_tr_b16 v[{wr+4*j+2}:{wr+4*j+3}], v28 offset:{woff(ks, j, 1)}")
        issue_fn(tag)
        for ks in range(2):
            fb = FR + ks * FS
            wr = fb + 4 * MT
            a(f"s_waitcnt lgkmcnt({min(15, MT + 2*NT) if ks == 0 else 0})")
            for j in range(NT):
                for i in range(MT):
                    ac = ACC + 4 * (j * MT + i)
                    a(f"v_mfma_f32_16x16x32_bf16 v[{ac}:{ac+3}], v[{wr+4*j}:{wr+4*j+3}], v[{fb+4*i}:{fb+4*i+3}], v[{ac}:{ac+3}]")
            if ln:
                for i in range(MT):
                    for q in range(4):
                        a(f"v_dot2_f32_bf16 v{60+i}, v{fb+4*i+q}, v64, v{60+i}")
                        a(f"v_dot2_f32_bf16 v{62+i}, v{fb+4*i+q}, v{fb+4*i+q}, v{62+i}")
                for j in range(NT):
                    for q in range(4):
                        a(f"v_dot2_f32_bf16 v{CS+j}, v{wr+4*j+q}, v64, v{CS+j}")
        a(f"s_add_u32 s66, s66, {SLOTB}")
        a(f"s_cmp_eq_u32 s66, {R*SLOTB}")
        a("s_cselect_b32 s66, 0, s66")
        a("s_sub_u32 s51, s51, 1")
        a("s_cmp_lg_u32 s51, 0")
        a(f"s_cbranch_scc1 {name}_{tag}loop")
        a("s_waitcnt vmcnt(0)")
        a("s_barrier")

    def ln_epilogue():
        regs = [60 + i for i in range(MT)] + [62 + i for i in range(MT)] + [CS + j for j in range(NT)]
        for v in regs:
            a(f"ds_swizzle_b32 v{FR+8+regs.index(v)}, v{v} offset:0x401F")
        a("s_waitcnt lgkmcnt(0)")
        for v in regs:
            a(f"v_add_f32 v{v}, v{v}, v{FR+8+regs.index(v)}")
            a(f"v_mov_b32 v{FR+8+regs.index(v)}, v{v}")
        a("s_nop 1")
        for v in regs:
            a(f"v_permlane32_swap_b32 v{v}, v{FR+8+regs.index(v)}")
        a("s_nop 1")
        for v in regs:
            a(f"v_add_f32 v{v}, v{v}, v{FR+8+regs.index(v)}")
        a(f"s_mul_i32 s57, s42, {64*NT}")
        a("v_lshl_add_u32 v50, v3, 2, s57")
        a("v_lshl_add_u32 v51, v4, 4, s57")
        for j in range(NT):
            a(f"ds_write_b32 v50, v{CS+j} offset:{64*j}")
        for i in range(MT):
            a(f"v_mul_f32 v{60+i}, {f32hex(1.0/640)}, v{60+i}")
            a(f"v_mul_f32 v{62+i}, {f32hex(1.0/640)}, v{62+i}")
            a(f"v_fma_f32 v{62+i}, -v{60+i}, v{60+i}, v{62+i}")
            a(f"v_add_f32 v50, {f32hex(1e-5)}, v{62+i}")
            a(f"v_rsq_f32 v{66+i}, v50")
            a("s_nop 0")
            if ln == 2:
                a(f"v_mul_f32 v50, v{62+i}, v{66+i}")
                a(f"v_mul_f32 v50, v50, v{66+i}")
                a(f"v_add_f32 v50, {f32hex(1e-5)}, v50")
                a("v_rsq_f32 v50, v50")
                a("s_nop 0")
                a(f"v_mul_f32 v{62+i}, v50, v{66+i}")
            else:
                a(f"v_mov_b32 v{62+i}, v{66+i}")
        a("s_waitcnt lgkmcnt(0)")
        for j in range(NT):
            a(f"ds_read_b128 v[{FR+4*j}:{FR+4*j+3}], v51 offset:{64*j}")
        if ln == 2:
            a("s_cmp_lg_u32 s33, 0")
            a(f"s_cbranch_scc1 {name}_nost")
            srd(a, 28, 4, WS_ST, S * 8)
            a("v_cmp_gt_u32 vcc, 16, v2")
            a("s_and_saveexec_b64 s[58:59], vcc")
            for i in range(MT):
                a(f"v_lshlrev_b32 v50, 3, v5")
                a(f"v_mov_b32 v52, v{60+i}")
                a(f"v_mov_b32 v53, v{66+i}")
                a(f"buffer_store_dwordx2 v[52:53], v50, s[28:31], 0 offen offset:{128*i}")
            a("s_mov_b64 exec, s[58:59]")
            a.label(f"{name}_nost")
        a("s_waitcnt lgkmcnt(0)")
        for j in range(NT):
            for i in range(MT):
                for r in range(4):
                    ac = ACC + 4 * (j * MT + i) + r
                    a(f"v_fma_f32 v{ac}, -v{60+i}, v{FR+4*j+r}, v{ac}")
                    a(f"v_mul_f32 v{ac}, v{ac}, v{62+i}")

    def tiles():
        for j in range(NT):
            for i in range(MT):
                yield j, i, ACC + 4 * (j * MT + i), (7 if i == 0 else 16), j * 32

    def store_all(srd_o):
        for j, i, ac, vo, off in tiles():
            a(f"v_cvt_pk_bf16_f32 v50, v{ac}, v{ac+1}")
            a(f"v_cvt_pk_bf16_f32 v51, v{ac+2}, v{ac+3}")
            guard = (epi == 'w3' and j == NT - 1)
            if guard:
                a(f"v_add_u32 v52, {16*j}, v6")
                a(f"v_cmp_gt_u32 vcc, {F}, v52")
                a("s_and_saveexec_b64 s[58:59], vcc")
            a(f"buffer_store_dwordx2 v[50:51], v{vo}, s[{srd_o}:{srd_o+3}], 0 offen offset:{off}")
            if guard:
                a("s_mov_b64 exec, s[58:59]")

    def load_res(srd_r, base):
        n = 0
        for j, i, ac, vo, off in tiles():
            a(f"buffer_load_dwordx2 v[{base+2*n}:{base+2*n+1}], v{vo}, s[{srd_r}:{srd_r+3}], 0 offen offset:{off}")
            n += 1

    def add_res(base):
        n = 0
        for j, i, ac, vo, off in tiles():
            for h in range(2):
                r = base + 2 * n + h
                a(f"v_lshlrev_b32 v50, 16, v{r}")
                a(f"v_and_b32 v51, 0xffff0000, v{r}")
                a(f"v_add_f32 v{ac+2*h}, v{ac+2*h}, v50")
                a(f"v_add_f32 v{ac+2*h+1}, v{ac+2*h+1}, v51")
            n += 1

    def gelu_loop():
        k = 2.0 * 0.7978845608028654 * 1.4426950408889634
        a(f"v_mov_b32 v58, {f32hex(0.044715)}")
        a("s_mov_b32 s70, 0")
        a.label(f"{name}_gl")
        a("s_set_gpr_idx_on s70, gpr_idx(SRC0)")
        for u in range(4):
            a(f"v_mov_b32 v{50+u}, v{ACC+u}")
        a("s_set_gpr_idx_off")
        for u in range(4):
            a(f"v_mul_f32 v{54+u}, v{50+u}, v{50+u}")
        for u in range(4):
            a(f"v_fma_f32 v{54+u}, v{54+u}, v58, 1.0")
        for u in range(4):
            a(f"v_mul_f32 v{54+u}, v{54+u}, v{50+u}")
        for u in range(4):
            a(f"v_mul_f32 v{54+u}, {f32hex(-k)}, v{54+u}")
        for u in range(4):
            a(f"v_exp_f32 v{54+u}, v{54+u}")
        a("s_nop 0")
        for u in range(4):
            a(f"v_add_f32 v{54+u}, 1.0, v{54+u}")
        for u in range(4):
            a(f"v_rcp_f32 v{54+u}, v{54+u}")
        a("s_nop 0")
        for u in range(4):
            a(f"v_mul_f32 v{50+u}, v{50+u}, v{54+u}")
        a("s_set_gpr_idx_on s70, gpr_idx(DST)")
        for u in range(4):
            a(f"v_mov_b32 v{ACC+u}, v{50+u}")
        a("s_set_gpr_idx_off")
        a("s_add_u32 s70, s70, 4")
        a(f"s_cmp_lt_u32 s70, {NACC}")
        a(f"s_cbranch_scc1 {name}_gl")

    RES1 = FR + 64 if False else 140
    RES2 = 140 + 2 * MT * NT
    loop("", issue, PER)
    stamp()
    if epi == 'wo':
        srd(a, 20, 36, 0, ACT_BYTES)
        load_res(20, RES1)
    if epi == 'w2':
        srd(a, 20, 4, WS_H, ACT_BYTES)
        load_res(20, RES1)
        srd(a, 24, 4, WS_ST, S * 8)
        a("v_lshlrev_b32 v50, 3, v5")
        for i in range(MT):
            a(f"buffer_load_dwordx2 v[{56+2*i}:{57+2*i}], v50, s[24:27], 0 offen offset:{128*i}")
    if epi == 'w4':
        srd(a, 20, 4, WS_X1, ACT_BYTES)
        srd(a, 24, 4, WS_H, ACT_BYTES)
        load_res(20, RES1)
        load_res(24, RES2)
    a("s_nop 7")
    if ln:
        ln_epilogue()
    a("s_waitcnt vmcnt(0)")
    if epi == 'qkv':
        srd(a, 16, 4, WS_Q, ACT_BYTES)
        for r in range(NACC):
            a(f"v_mul_f32 v{ACC+r}, {f32hex(QSCALE)}, v{ACC+r}")
        store_all(16)
    elif epi == 'wo':
        srd(a, 16, 4, WS_H, ACT_BYTES)
        add_res(RES1)
        store_all(16)
    elif epi in ('w1', 'w3'):
        if epi == 'w1':
            srd(a, 16, 4, WS_HH, ACT_BYTES)
        else:
            srd(a, 16, 4, WS_G, S * F * 2)
        gelu_loop()
        store_all(16)
    elif epi == 'w2':
        srd(a, 16, 4, WS_X1, ACT_BYTES)
        n = 0
        for i in range(MT):
            a(f"v_mul_f32 v{60+i}, v{56+2*i}, v{57+2*i}")
            a(f"v_sub_f32 v{60+i}, 0, v{60+i}")
        for j, i, ac, vo, off in tiles():
            for h in range(2):
                r = RES1 + 2 * n + h
                a(f"v_lshlrev_b32 v50, 16, v{r}")
                a(f"v_and_b32 v51, 0xffff0000, v{r}")
                a(f"v_fma_f32 v50, v50, v{57+2*i}, v{60+i}")
                a(f"v_fma_f32 v51, v51, v{57+2*i}, v{60+i}")
                a("v_cvt_pk_bf16_f32 v50, v50, v51")
                a("v_and_b32 v51, 0xffff0000, v50")
                a("v_lshlrev_b32 v50, 16, v50")
                a(f"v_add_f32 v{ac+2*h}, v{ac+2*h}, v50")
                a(f"v_add_f32 v{ac+2*h+1}, v{ac+2*h+1}, v51")
            n += 1
        store_all(16)
    elif epi == 'w4':
        srd(a, 16, 36, 0, ACT_BYTES)
        add_res(RES1)
        for j, i, ac, vo, off in tiles():
            for h in range(2):
                a(f"v_cvt_pk_bf16_f32 v50, v{ac+2*h}, v{ac+2*h+1}")
                a(f"v_lshlrev_b32 v{ac+2*h}, 16, v50")
                a(f"v_and_b32 v{ac+2*h+1}, 0xffff0000, v50")
        add_res(RES2)
        store_all(16)
    a("s_waitcnt vmcnt(0)")
    stamp()
    stamp_out()
    a(f"s_branch {name}_end")
    if epi == 'qkv':
        a.label(f"{name}_kv")
        a("s_waitcnt vmcnt(0)")
        a("s_barrier")
        for i in range(4):
            a(f"s_lshl_b32 s44, s42, 8")
            a(f"v_add_u32 v50, s44, v2")
            a(f"v_add_u32 v50, {64*i}, v50")
            a("v_lshrrev_b32 v51, 4, v50")
            a("v_and_b32 v52, 15, v50")
            a("v_mul_u32_u24 v53, 40, v51")
            a("v_lshl_add_u32 v53, v52, 2, v53")
            a("v_mov_b32 v54, 0x7ffffff0")
            a("v_cmp_gt_u32 vcc, 10, v52")
            a("s_nop 1")
            a(f"v_cndmask_b32 v{240+i}, v54, v53, vcc")
        a("s_mov_b32 s49, 0")
        a("s_mov_b32 s60, 0")
        a("s_mov_b32 s62, 0")
        a("s_mov_b32 s63, 0")
        a("s_lshl_b32 s65, s42, 10")
        a("s_add_u32 s65, s65, 8192")

        def kv_issue(tag):
            a(f"s_cmp_lt_u32 s60, {NC}")
            a("s_cselect_b32 s61, s62, 0x7ffffff0")
            a("s_add_u32 s60, s60, 1")
            a("s_add_u32 s62, s62, 128")
            a("s_add_u32 m0, s63, s64")
            a("s_nop 0")
            a("buffer_load_dwordx4 v10, s[8:11], s61 offen lds")
            a("s_add_u32 m0, m0, 1024")
            a("s_nop 0")
            a("buffer_load_dwordx4 v11, s[8:11], s61 offen lds")
            a("s_add_u32 m0, s63, s65")
            for i in range(4):
                a("s_nop 0")
                a(f"buffer_load_dword v{240+i}, s[12:15], s49 offen lds")
                a("s_add_u32 m0, m0, 256")
            a("s_add_u32 m0, m0, 3072")
            for i in range(4):
                a("s_nop 0")
                a(f"buffer_load_dword v{240+i}, s[16:19], s49 offen lds")
                a("s_add_u32 m0, m0, 256")
            a("s_add_u32 s49, s49, 2560")
            a(f"s_add_u32 s63, s63, {SLOTB}")
            a(f"s_cmp_eq_u32 s63, {R*SLOTB}")
            a("s_cselect_b32 s63, 0, s63")
        for c in range(R - 1):
            kv_issue(c)
        a("v_lshrrev_b32 v24, 2, v3")
        a("v_lshl_add_u32 v24, v4, 3, v24")
        a("v_lshlrev_b32 v24, 6, v24")
        a("v_lshl_add_u32 v24, v25, 3, v24")
        a("v_add_u32 v24, 8192, v24")
        loop("kv", kv_issue, 10, NT=4, woff=lambda ks, j, h: ks*2048 + h*256 + (j & 1)*32 + (j >> 1)*4096)
        a("s_nop 7")
        ln_epilogue()
        srd(a, 16, 4, WS_K, KV_BYTES)
        a("v_lshrrev_b32 v50, 5, v5")
        a("v_lshlrev_b32 v50, 11, v50")
        a("v_and_b32 v51, 31, v5")
        a("v_lshl_add_u32 v50, v51, 4, v50")
        a("v_lshrrev_b32 v51, 1, v4")
        a("v_lshl_add_u32 v50, v51, 9, v50")
        a("v_and_b32 v51, 1, v4")
        a("v_lshl_add_u32 v50, v51, 3, v50")
        for jj in range(2):
            ac = ACC + 4 * jj
            a(f"v_cvt_pk_bf16_f32 v52, v{ac}, v{ac+1}")
            a(f"v_cvt_pk_bf16_f32 v53, v{ac+2}, v{ac+3}")
            a(f"buffer_store_dwordx2 v[52:53], v50, s[16:19], 0 offen offset:{1024*jj}")
        srd(a, 16, 4, WS_V, KV_BYTES)
        a("v_lshrrev_b32 v50, 4, v5")
        a("v_lshlrev_b32 v50, 10, v50")
        a("v_bfe_u32 v51, v5, 2, 1")
        a("v_lshl_add_u32 v50, v51, 9, v50")
        a("v_and_b32 v51, 3, v5")
        a("v_bfe_u32 v52, v5, 3, 1")
        a("v_lshl_add_u32 v51, v52, 2, v51")
        a("v_lshl_add_u32 v50, v51, 1, v50")
        a("v_lshl_add_u32 v50, v4, 6, v50")
        a("v_cmp_eq_u32 vcc, 1, v4")
        a("s_nop 1")
        a(f"v_cndmask_b32 v{ACC+12}, v{ACC+12}, 1.0, vcc")
        for jj in range(2):
            for r in range(4):
                ac = ACC + 8 + 4 * jj + r
                a(f"v_cvt_pk_bf16_f32 v51, v{ac}, v{ac}")
                a(f"buffer_store_short v51, v50, s[16:19], 0 offen offset:{(16*jj + r)*16}")
    a.label(f"{name}_end")
    a("s_endpgm")


def gen_attn(a, name):
    kernel_header(a, name)
    a("s_cmp_ge_u32 s2, 256")
    a(f"s_cbranch_scc1 {name}_end")
    a(f"s_load_dwordx2 s[4:5], s[0:1], {KA['ws']}")
    a("v_lshrrev_b32 v1, 6, v0")
    a("v_and_b32 v2, 63, v0")
    a("v_readfirstlane_b32 s42, v1")
    a("s_lshr_b32 s32, s2, 2")
    a("s_and_b32 s33, s2, 3")
    a("s_lshl_b32 s33, s33, 3")
    a("s_and_b32 s43, s42, 7")
    a("s_add_u32 s33, s33, s43")
    a("s_lshr_b32 s43, s42, 3")
    a("s_waitcnt lgkmcnt(0)")
    srd(a, 8, 4, WS_Q, ACT_BYTES)
    srd(a, 12, 4, WS_K, KV_BYTES)
    srd(a, 16, 4, WS_V, KV_BYTES)
    srd(a, 20, 4, WS_O, ACT_BYTES)
    ST = 100
    a("v_lshrrev_b32 v3, 9, v0")
    a("v_and_b32 v4, 511, v0")
    a("v_lshlrev_b32 v4, 4, v4")
    a("v_lshl_add_u32 v116, v3, 16, v4")
    a("v_lshl_add_u32 v117, v3, 15, v4")
    a("s_mov_b32 s48, 0")

    def issue():
        a(f"buffer_load_dwordx4 v[{ST}:{ST+3}], v116, s[12:15], s48 offen")
        a(f"buffer_load_dwordx4 v[{ST+4}:{ST+7}], v116, s[12:15], s48 offen offset:... ".replace("offset:... ", "") if False else f"buffer_load_dwordx4 v[{ST+4}:{ST+7}], v118, s[12:15], s48 offen")
        a(f"buffer_load_dwordx4 v[{ST+8}:{ST+11}], v116, s[16:19], s48 offen")
        a(f"buffer_load_dwordx4 v[{ST+12}:{ST+15}], v118, s[16:19], s48 offen")
        a("s_add_u32 s48, s48, 16384")

    def write(addr):
        a(f"ds_write_b128 {addr}, v[{ST}:{ST+3}]")
        a(f"ds_write_b128 {addr}, v[{ST+4}:{ST+7}] offset:8192")
        a(f"ds_write_b128 {addr}, v[{ST+8}:{ST+11}] offset:16384")
        a(f"ds_write_b128 {addr}, v[{ST+12}:{ST+15}] offset:24576")
    a("v_add_u32 v118, 8192, v116")
    issue()
    a("v_and_b32 v4, 31, v2")
    a("v_lshrrev_b32 v5, 5, v2")
    a("s_lshl_b32 s34, s32, 5")
    a("v_add_u32 v6, s34, v4")
    a("s_movk_i32 s35, 1280")
    a("v_mul_lo_u32 v6, v6, s35")
    a("s_mul_i32 s36, s33, 40")
    a("v_add_u32 v6, s36, v6")
    a("v_lshl_add_u32 v7, v5, 4, v6")
    a("buffer_load_dwordx2 v[8:9], v7, s[8:11], 0 offen")
    a("buffer_load_dwordx2 v[10:11], v7, s[8:11], 0 offen offset:8")
    a("buffer_load_dwordx2 v[12:13], v6, s[8:11], 0 offen offset:32")
    a("v_mov_b32 v14, 0")
    a("v_mov_b32 v15, 0")
    for r in range(16):
        a(f"v_mov_b32 v{32+r}, 0")
        a(f"v_mov_b32 v{48+r}, 0")
    a("v_mov_b32 v96, 0xff800000")
    a("v_mov_b32 v95, 0xff800000")
    a("s_lshl_b32 s44, s43, 15")
    a("v_lshlrev_b32 v97, 4, v2")
    a("v_add_u32 v97, s44, v97")
    a("s_waitcnt vmcnt(0)")
    a("v_cmp_gt_u32 vcc, 32, v2")
    a("s_nop 1")
    a("v_cndmask_b32 v12, 0, v12, vcc")
    a("v_cndmask_b32 v13, 0, v13, vcc")
    write("v117")
    issue()
    a("s_waitcnt lgkmcnt(0)")
    a("s_barrier")
    SREG = [16, 76]

    def off_of(sreg_t, sdst):
        a(f"s_lshr_b32 s56, {sreg_t}, 3")
        a("s_and_b32 s56, s56, 1")
        a("s_lshl_b32 s56, s56, 16")
        a(f"s_and_b32 {sdst}, {sreg_t}, 7")
        a(f"s_lshl_b32 {sdst}, {sdst}, 11")
        a(f"s_add_u32 {sdst}, {sdst}, s56")

    def qk(p):
        s0 = SREG[p]
        a(f"v_mfma_f32_32x32x16_bf16 v[{s0}:{s0+15}], v[92:95], v[8:11], v[32:47]".replace("v[92:95]", "v[120:123]"))
        a(f"v_mfma_f32_32x32x16_bf16 v[{s0}:{s0+15}], v[124:127], v[12:15], v[{s0}:{s0+15}]")
    a("ds_read_b128 v[120:123], v97")
    a("ds_read_b128 v[124:127], v97 offset:1024")
    a("s_waitcnt lgkmcnt(0)")
    qk(0)
    a("s_mov_b32 s50, 0")
    a.label(f"{name}_loop")
    if os.environ.get("ASTAMP"):
        a("s_memtime s[60:61]")
        a("s_waitcnt lgkmcnt(0)")
        a("s_lshr_b32 m0, s50, 1")
        a("s_nop 3")
        a("v_writelane_b32 v99, s60, m0".replace("v99", "v1"))
    for p in range(2):
        s0 = SREG[p]; s1 = SREG[p ^ 1]
        lab = f"{name}_p{p}"
        if p == 0:
            a("s_and_b32 s57, s50, 7")
            a("s_cmp_lg_u32 s57, 0")
            a(f"s_cbranch_scc1 {lab}_nochunk")
            a("s_barrier")
            a.label(f"{lab}_nochunk")
        off_of("s50", "s58")
        a("v_add_u32 v94, s58, v97")
        a("ds_read_b128 v[64:67], v94 offset:16384".replace("v[64:67]", "v[68:71]"))
        a("ds_read_b128 v[72:75], v94 offset:17408")
        if p == 0:
            a("s_cmp_lg_u32 s57, 6")
            a(f"s_cbranch_scc1 {lab}_nostage")
            a("s_add_u32 s59, s50, 2")
            off_of("s59", "s58")
            a("v_add_u32 v94, s58, v117")
            a("s_waitcnt vmcnt(0)")
            write("v94")
            issue()
            a("s_waitcnt lgkmcnt(0)")
            a("s_barrier")
            a.label(f"{lab}_nostage")
        a("s_add_u32 s59, s50, 1")
        off_of("s59", "s58")
        a("v_add_u32 v94, s58, v97")
        a("ds_read_b128 v[120:123], v94")
        a("ds_read_b128 v[124:127], v94 offset:1024")
        a(f"v_max3_f32 v98, v{s0}, v{s0+1}, v{s0+2}")
        a(f"v_max3_f32 v99, v{s0+3}, v{s0+4}, v{s0+5}")
        a(f"v_max3_f32 v92, v{s0+6}, v{s0+7}, v{s0+8}")
        a(f"v_max3_f32 v93, v{s0+9}, v{s0+10}, v{s0+11}")
        a(f"v_max3_f32 v119, v{s0+12}, v{s0+13}, v{s0+14}")
        a(f"v_max3_f32 v98, v98, v99, v{s0+15}")
        a("v_max3_f32 v98, v98, v92, v93")
        a("v_max_f32 v98, v98, v119")
        a("v_cmp_gt_f32 vcc, v98, v96")
        a("s_add_u32 s50, s50, 1")
        a(f"s_cbranch_vccnz {lab}_rare")
        a.label(f"{lab}_back")
        a("s_waitcnt lgkmcnt(0)")
        qk(p ^ 1)
        for r in range(16):
            a(f"v_exp_f32 v{s0+r}, v{s0+r}")
        for r in range(8):
            a(f"v_cvt_pk_bf16_f32 v{s0+r}, v{s0+2*r}, v{s0+2*r+1}")
        a("s_nop 1")
        a(f"v_mfma_f32_32x32x16_bf16 v[48:63], v[68:71], v[{s0}:{s0+3}], v[48:63]")
        a(f"v_mfma_f32_32x32x16_bf16 v[48:63], v[72:75], v[{s0+4}:{s0+7}], v[48:63]")
    a("s_cmp_lt_u32 s50, 32")
    a(f"s_cbranch_scc1 {name}_loop")
    a(f"s_branch {name}_fin")
    for p in range(2):
        s0 = SREG[p]
        lab = f"{name}_p{p}"
        a.label(f"{lab}_rare")
        a("v_mov_b32 v99, v98")
        a("s_nop 1")
        a("v_permlane32_swap_b32 v98, v99")
        a("s_nop 1")
        a("v_max3_f32 v98, v98, v99, v95")
        a("v_sub_f32 v99, 0, v98")
        a("v_exp_f32 v99, v99")
        a("s_nop 7")
        for r in range(16):
            a(f"v_sub_f32 v{s0+r}, v{s0+r}, v98")
            a(f"v_sub_f32 v{32+r}, v{32+r}, v98")
            a(f"v_mul_f32 v{48+r}, v{48+r}, v99")
        a(f"v_mov_b32 v96, {f32hex(8.0)}")
        a("v_mov_b32 v95, 0")
        a("s_nop 1")
        a(f"s_branch {lab}_back")
    a.label(f"{name}_fin")
    if os.environ.get("ASTAMP"):
        a(f"s_load_dwordx2 s[96:97], s[0:1], {KA['dbg']}")
        a("s_waitcnt lgkmcnt(0)")
        srd(a, 92, 96, 0, 256)
        a("s_cmp_lg_u32 s2, 37")
        a(f"s_cbranch_scc1 {name}_nost")
        a("s_cmp_lg_u32 s42, 0")
        a(f"s_cbranch_scc1 {name}_nost")
        a("v_lshlrev_b32 v119, 2, v2")
        a("buffer_store_dword v1, v119, s[92:95], 0 offen")
        a.label(f"{name}_nost")
    a("s_waitcnt vmcnt(0) lgkmcnt(0)")
    a("s_nop 15")
    a("s_barrier")
    a("s_and_b32 s44, s42, 7")
    a("s_mul_i32 s44, s44, 4352")
    a("v_lshlrev_b32 v94, 2, v2")
    a("v_add_u32 v94, s44, v94")
    a("s_cmp_eq_u32 s43, 0")
    a(f"s_cbranch_scc1 {name}_h0")
    a("ds_write_b32 v94, v32")
    for r in range(16):
        a(f"ds_write_b32 v94, v{48+r} offset:{256*(r+1)}")
    a("s_waitcnt lgkmcnt(0)")
    a("s_barrier")
    a("s_endpgm")
    a.label(f"{name}_h0")
    a("s_barrier")
    a("ds_read_b32 v98, v94")
    for r in range(16):
        a(f"ds_read_b32 v{16+r}, v94 offset:{256*(r+1)}")
    a("s_waitcnt lgkmcnt(0)")
    a("v_min_f32 v99, v98, v32")
    a("v_sub_f32 v92, v99, v32")
    a("v_sub_f32 v93, v99, v98")
    a("v_exp_f32 v92, v92")
    a("v_exp_f32 v93, v93")
    a("s_nop 0")
    for r in range(16):
        a(f"v_mul_f32 v{48+r}, v{48+r}, v92")
        a(f"v_fmac_f32 v{48+r}, v{16+r}, v93")
    a("v_mov_b32 v98, v56")
    a("v_mov_b32 v99, v56")
    a("s_nop 1")
    a("v_permlane32_swap_b32 v98, v99")
    a("s_nop 1")
    a("v_rcp_f32 v99, v99")
    a("s_nop 0")
    for r in range(12):
        a(f"v_mul_f32 v{48+r}, v{48+r}, v99")
    for g in range(3):
        a(f"v_cvt_pk_bf16_f32 v{64+2*g}, v{48+4*g}, v{49+4*g}")
        a(f"v_cvt_pk_bf16_f32 v{65+2*g}, v{50+4*g}, v{51+4*g}")
    a("v_lshl_add_u32 v7, v5, 3, v6")
    a("buffer_store_dwordx2 v[64:65], v7, s[20:23], 0 offen")
    a("buffer_store_dwordx2 v[66:67], v7, s[20:23], 0 offen offset:16")
    a("v_cmp_gt_u32 vcc, 32, v2")
    a("s_and_saveexec_b64 s[50:51], vcc")
    a("buffer_store_dwordx2 v[68:69], v7, s[20:23], 0 offen offset:32")
    a.label(f"{name}_end")
    a("s_endpgm")


def main():
    a = Asm()
    hdr = open("cdna_kernels/%s.s.ref" % NAME).read().split("\n")
    for ln in hdr:
        if ln.startswith("; Override launch"):
            break
        a.raw(ln)
    kernels = [
        ("k1_qkv_kernel", 32 * 9, 256, gemm_lds(80, 4)),
        ("k2_attn_kernel", 256, 1024, 131072),
        ("k3_wo_kernel", 256, 256, gemm_lds(80, 6)),
        ("k4_w1_kernel", 256, 256, gemm_lds(80, 6)),
        ("k5_w2_kernel", 256, 256, gemm_lds(80, 6)),
        ("k6_w3_kernel", 256, 256, gemm_lds(224, 4)),
        ("k7_w4_kernel", 256, 256, gemm_lds(80, 6)),
    ]
    for k, g, b, l in kernels:
        a.raw(f"; @launch kernel={k} grid=({g},1,1) block=({b},1,1) lds={l}")
    a.raw('.amdgcn_target "amdgcn-amd-amdhsa--gfx950"')
    a.raw(".text")
    c80 = dict(BN=80, NSTRIDE=80, NB=8, WM=4, WN=1)
    gen_gemm(a, "k1_qkv_kernel", a_ptr=('arg', KA['x']), K=640, w_ptr=KA['wq'], N=640, R=4, ln=1, shift=False, epi='qkv', **c80)
    gen_attn(a, "k2_attn_kernel")
    gen_gemm(a, "k3_wo_kernel", a_ptr=('ws', WS_O), K=640, w_ptr=KA['wo'], N=640, R=6, ln=0, shift=False, epi='wo', **c80)
    gen_gemm(a, "k4_w1_kernel", a_ptr=('ws', WS_H), K=640, w_ptr=KA['w1'], N=640, R=6, ln=2, shift=False, epi='w1', **c80)
    gen_gemm(a, "k5_w2_kernel", a_ptr=('ws', WS_HH), K=640, w_ptr=KA['w2'], N=640, R=6, ln=0, shift=True, epi='w2', **c80)
    gen_gemm(a, "k6_w3_kernel", a_ptr=('ws', WS_X1), K=640, w_ptr=KA['w3'], N=F, BN=224, NSTRIDE=216, NB=8, WM=2, WN=2, R=4, ln=1, shift=False, epi='w3')
    gen_gemm(a, "k7_w4_kernel", a_ptr=('ws', WS_G), K=F, w_ptr=KA['w4'], N=640, R=6, ln=0, shift=False, epi='w4', **c80)
    a.raw('.section .rodata,"a"')
    for k, g, b, l in kernels:
        kernel_desc(a, k, vgpr=(128 if 'attn' in k else 256))
    open("cdna_kernels/%s.s" % NAME, "w").write(a.text())


if __name__ == "__main__":
    main()
```

```python
import sys, os, struct

NAME = "sequential_preLN__grouped_kv_mqa__mixer_s_mlp__prompt"
KA = dict(x=0, wq=8, wk=16, wv=24, wo=32, bx=40, w1=48, w2=56, w3=64, w4=72, out=80, dbg=88, ws=96)
S, D, F = 2048, 640, 1728
ACT_BYTES = S * D * 2
WS_Q = 0x0
WS_K = 0x300000
WS_V = 0x340000
WS_ST = 0x380000
WS_O = 0x400000
WS_H = 0x700000
WS_HH = 0xD00000
WS_X1 = 0x1000000
WS_G = 0x1300000
KV_BYTES = 2048 * 32 * 2
QSCALE = 1.4426950408889634 / (20.0 ** 0.5)
ONES_BF16 = 0x3f803f80


def f32hex(x):
    return "0x%08x" % struct.unpack("<I", struct.pack("<f", x))[0]


class Asm:
    def __init__(self):
        self.lines = []

    def __call__(self, s):
        for ln in s.strip("\n").split("\n"):
            self.lines.append("    " + ln.strip())

    def label(self, l):
        self.lines.append(l + ":")

    def raw(self, s):
        self.lines.append(s)

    def text(self):
        return "\n".join(self.lines) + "\n"


def srd(a, d, base, off, nbytes):
    if off:
        a(f"s_add_u32 s{d}, s{base}, {off}")
        a(f"s_addc_u32 s{d+1}, s{base+1}, 0")
    else:
        a(f"s_mov_b32 s{d}, s{base}")
        a(f"s_mov_b32 s{d+1}, s{base+1}")
    a(f"s_and_b32 s{d+1}, s{d+1}, 0xffff")
    a(f"s_mov_b32 s{d+2}, {nbytes}")
    a(f"s_mov_b32 s{d+3}, 0x00020000")


def kernel_header(a, name):
    a.raw(f".globl {name}")
    a.raw(".p2align 8")
    a.raw(f".type {name},@function")
    a.label(name)


def kernel_desc(a, name, vgpr=256, sgpr=102):
    a.raw(".p2align 6")
    a.raw(f".amdhsa_kernel {name}")
    a.raw(f"  .amdhsa_next_free_vgpr {vgpr}")
    a.raw(f"  .amdhsa_next_free_sgpr {sgpr}")
    a.raw(f"  .amdhsa_accum_offset {vgpr}")
    a.raw("  .amdhsa_group_segment_fixed_size 0")
    a.raw("  .amdhsa_kernarg_size 104")
    a.raw("  .amdhsa_user_sgpr_count 2")
    a.raw("  .amdhsa_user_sgpr_kernarg_segment_ptr 1")
    a.raw("  .amdhsa_system_sgpr_workgroup_id_x 1")
    a.raw(".end_amdhsa_kernel")


XS_STRIDE = 144


def gelu_code(a, x, t0, t1):
    k = 2.0 * 0.7978845608028654 * 1.4426950408889634
    a(f"v_mul_f32 v{t0}, v{x}, v{x}")
    a(f"v_fma_f32 v{t0}, v{t0}, v{t1}, 1.0")
    a(f"v_mul_f32 v{t0}, v{t0}, v{x}")
    a(f"v_mul_f32 v{t0}, {f32hex(-k)}, v{t0}")
    a(f"v_exp_f32 v{t0}, v{t0}")
    a("s_nop 0")
    a(f"v_add_f32 v{t0}, 1.0, v{t0}")
    a(f"v_rcp_f32 v{t0}, v{t0}")
    a("s_nop 0")
    a(f"v_mul_f32 v{x}, v{x}, v{t0}")


def gemm_lds(BN, R):
    nwp = (64 * (BN * 2 // 16) + 255) // 256 * 256
    return R * (8192 + nwp * 16)


def gen_gemm(a, name, *, a_ptr, K, w_ptr, N, BN, NSTRIDE, NB, WM, WN, R, ln, shift, epi):
    STAMP = os.environ.get("STAMP", "")
    nst = [0]
    def stamp():
        if STAMP != name:
            return
        a(f"s_memtime s[{80+2*nst[0]}:{81+2*nst[0]}]")
        nst[0] += 1
    def stamp_out():
        if STAMP != name:
            return
        a("s_waitcnt lgkmcnt(0)")
        a(f"s_load_dwordx2 s[96:97], s[0:1], {KA['dbg']}")
        a("s_waitcnt lgkmcnt(0)")
        srd(a, 92, 96, 0, 256)
        a("s_cmp_lg_u32 s2, 37")
        a(f"s_cbranch_scc1 {name}_nost2")
        a("s_cmp_lg_u32 s42, 0")
        a(f"s_cbranch_scc1 {name}_nost2")
        a("v_mov_b32 v50, 0")
        for i in range(nst[0]):
            a(f"v_mov_b32 v51, s{80+2*i}")
            a(f"buffer_store_dword v51, v50, s[92:95], 0 offen offset:{4*i}")
        a.label(f"{name}_nost2")
    lda = K * 2
    ldw = N * 2
    nbk = NB + (1 if epi == 'qkv' else 0)
    nwg = 32 * nbk
    NC = K // 64
    MT = 4 // WM
    NT = BN // 16 // WN
    WROW = BN * 2
    PPR = BN * 2 // 16
    NWP = 64 * PPR
    NW = (NWP + 255) // 256
    SLOTB = 8192 + NW * 4096
    PER = 2 + NW
    ACC = 72
    NACC = 4 * MT * NT
    FR = ACC + NACC
    assert FR + 8 * (MT + NT) <= 236
    CS = 40
    kernel_header(a, name)
    a(f"s_cmp_ge_u32 s2, {nwg}")
    a(f"s_cbranch_scc1 {name}_end")
    stamp()
    a(f"s_load_dwordx2 s[4:5], s[0:1], {KA['ws']}")
    a(f"s_load_dwordx2 s[6:7], s[0:1], {w_ptr}")
    if a_ptr[0] == 'arg':
        a(f"s_load_dwordx2 s[34:35], s[0:1], {a_ptr[1]}")
    if epi == 'qkv':
        a(f"s_load_dwordx2 s[36:37], s[0:1], {KA['wk']}")
        a(f"s_load_dwordx2 s[38:39], s[0:1], {KA['wv']}")
    if epi == 'wo':
        a(f"s_load_dwordx2 s[36:37], s[0:1], {KA['x']}")
    if epi == 'w4':
        a(f"s_load_dwordx2 s[36:37], s[0:1], {KA['out']}")
    magic = (1 << 32) // nbk + 1
    a(f"s_mul_hi_u32 s32, s2, {magic}")
    a(f"s_mul_i32 s33, s32, {nbk}")
    a(f"s_sub_u32 s33, s2, s33")
    a("s_lshl_b32 s40, s32, 6")
    a(f"s_mul_i32 s41, s33, {NSTRIDE}")
    a("v_lshrrev_b32 v1, 6, v0")
    a("v_and_b32 v2, 63, v0")
    a("v_readfirstlane_b32 s42, v1")
    a("v_lshrrev_b32 v8, 3, v2")
    a("v_and_b32 v9, 7, v2")
    a("v_xor_b32 v9, v9, v8")
    a("s_lshl_b32 s43, s42, 4")
    a("s_add_u32 s43, s43, s40")
    a("v_add_u32 v10, s43, v8")
    a(f"s_mov_b32 s45, {lda}")
    a("v_mul_lo_u32 v10, v10, s45")
    a("v_lshl_add_u32 v10, v9, 4, v10")
    a(f"v_add_u32 v11, {8*lda}, v10")
    is_kv = None
    a(f"s_mov_b32 s46, {ldw}")
    a(f"s_mov_b32 s48, {(1 << 32) // PPR + 1}")
    a("s_lshl_b32 s47, s41, 1")
    a(f"s_mul_i32 s44, s42, {NW*64}")
    for i in range(NW):
        a(f"v_add_u32 v50, s44, v2")
        if i:
            a(f"v_add_u32 v50, {64*i}, v50")
        a("v_mul_hi_u32 v51, v50, s48")
        a(f"v_mul_u32_u24 v52, {PPR}, v51")
        a("v_sub_u32 v52, v50, v52")
        a("v_mul_lo_u32 v53, v51, s46")
        a("v_lshl_add_u32 v53, v52, 4, v53")
        a(f"v_add_u32 v{240+i}, s47, v53")
        if NWP % 256:
            a(f"v_mov_b32 v53, 0x7ffffff0")
            a(f"v_cmp_le_u32 vcc, {NWP}, v50")
            a("s_nop 1")
            a(f"v_cndmask_b32 v{240+i}, v{240+i}, v53, vcc")
    a("s_waitcnt lgkmcnt(0)")
    if a_ptr[0] == 'arg':
        srd(a, 8, 34, 0, S * lda)
    else:
        srd(a, 8, 4, a_ptr[1], S * lda)
    srd(a, 12, 6, 0, K * ldw)
    if epi == 'qkv':
        a(f"s_cmp_eq_u32 s33, {NB}")
        a(f"s_cbranch_scc0 {name}_notkv")
        srd(a, 12, 36, 0, 640 * 40)
        srd(a, 16, 38, 0, 640 * 40)
        a.label(f"{name}_notkv")
    a("s_mov_b32 s49, 0")
    a("s_mov_b32 s50, 0")
    a("s_mov_b32 s60, 0")
    a("s_mov_b32 s62, 0")
    a("s_mov_b32 s63, 0")
    a("s_lshl_b32 s64, s42, 11")
    a(f"s_mul_i32 s65, s42, {NW*1024}")
    a("s_add_u32 s65, s65, 8192")

    def issue(tag):
        a(f"s_cmp_lt_u32 s60, {NC}")
        a("s_cselect_b32 s61, s62, 0x7ffffff0")
        a("s_add_u32 s60, s60, 1")
        a("s_add_u32 s62, s62, 128")
        if shift:
            a("v_add_u32 v12, s50, v9")
            a(f"v_mov_b32 v13, {(-lda) & 0xffffffff}")
            a("v_cmp_le_u32 vcc, 20, v12")
            a(f"v_mov_b32 v14, {lda}")
            a("v_cndmask_b32 v13, v13, v14, vcc")
            a("v_cmp_le_u32 vcc, 40, v12")
            a(f"v_mov_b32 v14, {(-2*lda) & 0xffffffff}")
            a("v_cndmask_b32 v13, v13, v14, vcc")
            a("v_cmp_le_u32 vcc, 60, v12")
            a(f"v_mov_b32 v14, {2*lda}")
            a("v_cndmask_b32 v13, v13, v14, vcc")
            a("v_add_u32 v14, v13, v10")
            a("v_add_u32 v15, v13, v11")
            a("s_add_u32 s50, s50, 8")
            x0, x1 = 14, 15
        else:
            x0, x1 = 10, 11
        a("s_add_u32 m0, s63, s64")
        a("s_nop 0")
        a(f"buffer_load_dwordx4 v{x0}, s[8:11], s61 offen lds")
        a("s_add_u32 m0, m0, 1024")
        a("s_nop 0")
        a(f"buffer_load_dwordx4 v{x1}, s[8:11], s61 offen lds")
        a("s_add_u32 m0, s63, s65")
        for i in range(NW):
            a("s_nop 0")
            a(f"buffer_load_dwordx4 v{240+i}, s[12:15], s49 offen lds")
            if i + 1 < NW:
                a("s_add_u32 m0, m0, 1024")
        a(f"s_add_u32 s49, s49, {64*ldw}")
        a(f"s_add_u32 s63, s63, {SLOTB}")
        a(f"s_cmp_eq_u32 s63, {R*SLOTB}")
        a("s_cselect_b32 s63, 0, s63")

    a(f"s_lshr_b32 s53, s42, {(WN-1).bit_length()}")
    a(f"s_and_b32 s54, s42, {WN-1}")
    a("v_and_b32 v3, 15, v2")
    a("v_lshrrev_b32 v4, 4, v2")
    a(f"s_mul_i32 s55, s53, {MT*16}")
    a("s_add_u32 s55, s55, s40")
    a("v_add_u32 v5, s55, v3")
    a(f"s_mul_i32 s56, s54, {NT*16}")
    a("s_add_u32 s56, s56, s41")
    a("v_lshl_add_u32 v6, v4, 2, s56")
    outN = F if epi == 'w3' else D
    a(f"s_mov_b32 s44, {outN * 2}")
    a("v_mul_lo_u32 v7, v5, s44")
    a("v_lshl_add_u32 v7, v6, 1, v7")
    a(f"v_add_u32 v16, {16*outN*2}, v7")
    RES1 = 140
    RES2 = 140 + 2 * MT * NT
    def tiles0():
        for j in range(NT):
            for i in range(MT):
                yield j, i, (7 if i == 0 else 16), j * 32
    def pre_res(srd_r, base):
        n = 0
        for j, i, vo, off in tiles0():
            a(f"buffer_load_dwordx2 v[{base+2*n}:{base+2*n+1}], v{vo}, s[{srd_r}:{srd_r+3}], 0 offen offset:{off}")
            n += 1
    if epi == 'wo':
        srd(a, 20, 36, 0, ACT_BYTES)
        pre_res(20, RES1)
    if epi == 'w2':
        srd(a, 20, 4, WS_H, ACT_BYTES)
        pre_res(20, RES1)
        srd(a, 24, 4, WS_ST, S * 8)
        a("v_lshlrev_b32 v50, 3, v5")
        for i in range(MT):
            a(f"buffer_load_dwordx2 v[{56+2*i}:{57+2*i}], v50, s[24:27], 0 offen offset:{128*i}")
    if epi == 'w4':
        srd(a, 20, 4, WS_X1, ACT_BYTES)
        srd(a, 24, 4, WS_H, ACT_BYTES)
        pre_res(20, RES1)
        pre_res(24, RES2)
    for c in range(R - 1):
        issue(c)
    stamp()
    a(f"s_lshr_b32 s53, s42, {(WN-1).bit_length()}")
    a(f"s_and_b32 s54, s42, {WN-1}")
    a("v_and_b32 v3, 15, v2")
    a("v_lshrrev_b32 v4, 4, v2")
    a("v_and_b32 v22, 7, v3")
    a("v_xor_b32 v22, v22, v4")
    a("v_lshlrev_b32 v22, 4, v22")
    a("v_lshl_add_u32 v22, v3, 7, v22")
    a(f"s_mul_i32 s55, s53, {MT*2048}")
    a("v_add_u32 v22, s55, v22")
    a("v_xor_b32 v23, 64, v22")
    a("v_lshrrev_b32 v24, 2, v3")
    a("v_lshl_add_u32 v24, v4, 3, v24")
    a(f"v_mul_u32_u24 v24, {WROW}, v24")
    a("v_and_b32 v25, 3, v2")
    a("v_lshl_add_u32 v24, v25, 3, v24")
    a(f"s_mul_i32 s55, s54, {NT*32}")
    a(f"s_add_u32 s55, s55, 8192")
    a("v_add_u32 v24, s55, v24")
    for r in range(NACC):
        a(f"v_mov_b32 v{ACC+r}, 0")
    for i in range(MT):
        a(f"v_mov_b32 v{60+i}, 0")
        a(f"v_mov_b32 v{62+i}, 0")
    a(f"v_mov_b32 v64, 0x{ONES_BF16:08x}")
    if ln:
        for j in range(NT):
            a(f"v_mov_b32 v{CS+j}, 0")
    a("s_mov_b32 s66, 0")
    a(f"s_mov_b32 s51, {NC}")
    if epi == 'qkv':
        a(f"s_cmp_eq_u32 s33, {NB}")
        a(f"s_cbranch_scc1 {name}_kv")

    def loop(tag, issue_fn, per, NT=NT, woff=None):
        if woff is None:
            woff = lambda ks, j, h: ks*32*WROW + h*4*WROW + j*32
        a.label(f"{name}_{tag}loop")
        a(f"s_waitcnt vmcnt({per*(R-2)})")
        a("s_barrier")
        a("v_add_u32 v26, s66, v22")
        a("v_add_u32 v27, s66, v23")
        a("v_add_u32 v28, s66, v24")
        FS = 4 * (MT + NT)
        for ks in range(2):
            fb = FR + ks * FS
            for i in range(MT):
                a(f"ds_read_b128 v[{fb+4*i}:{fb+4*i+3}], v{26+ks} offset:{i*2048}")
            wr = fb + 4 * MT
            for j in range(NT):
                a(f"ds_read_b64_tr_b16 v[{wr+4*j}:{wr+4*j+1}], v28 offset:{woff(ks, j, 0)}")
                a(f"ds_read_b64_tr_b16 v[{wr+4*j+2}:{wr+4*j+3}], v28 offset:{woff(ks, j, 1)}")
        issue_fn(tag)
        for ks in range(2):
            fb = FR + ks * FS
            wr = fb + 4 * MT
            a(f"s_waitcnt lgkmcnt({min(15, MT + 2*NT) if ks == 0 else 0})")
            for j in range(NT):
                for i in range(MT):
                    ac = ACC + 4 * (j * MT + i)
                    a(f"v_mfma_f32_16x16x32_bf16 v[{ac}:{ac+3}], v[{wr+4*j}:{wr+4*j+3}], v[{fb+4*i}:{fb+4*i+3}], v[{ac}:{ac+3}]")
            if ln:
                for i in range(MT):
                    for q in range(4):
                        a(f"v_dot2_f32_bf16 v{60+i}, v{fb+4*i+q}, v64, v{60+i}")
                        a(f"v_dot2_f32_bf16 v{62+i}, v{fb+4*i+q}, v{fb+4*i+q}, v{62+i}")
                for j in range(NT):
                    for q in range(4):
                        a(f"v_dot2_f32_bf16 v{CS+j}, v{wr+4*j+q}, v64, v{CS+j}")
        a(f"s_add_u32 s66, s66, {SLOTB}")
        a(f"s_cmp_eq_u32 s66, {R*SLOTB}")
        a("s_cselect_b32 s66, 0, s66")
        a("s_sub_u32 s51, s51, 1")
        a("s_cmp_lg_u32 s51, 0")
        a(f"s_cbranch_scc1 {name}_{tag}loop")
        a("s_waitcnt vmcnt(0)")
        a("s_barrier")

    def ln_epilogue():
        regs = [60 + i for i in range(MT)] + [62 + i for i in range(MT)] + [CS + j for j in range(NT)]
        for v in regs:
            a(f"ds_swizzle_b32 v{FR+8+regs.index(v)}, v{v} offset:0x401F")
        a("s_waitcnt lgkmcnt(0)")
        for v in regs:
            a(f"v_add_f32 v{v}, v{v}, v{FR+8+regs.index(v)}")
            a(f"v_mov_b32 v{FR+8+regs.index(v)}, v{v}")
        a("s_nop 1")
        for v in regs:
            a(f"v_permlane32_swap_b32 v{v}, v{FR+8+regs.index(v)}")
        a("s_nop 1")
        for v in regs:
            a(f"v_add_f32 v{v}, v{v}, v{FR+8+regs.index(v)}")
        a(f"s_mul_i32 s57, s42, {64*NT}")
        a("v_lshl_add_u32 v50, v3, 2, s57")
        a("v_lshl_add_u32 v51, v4, 4, s57")
        for j in range(NT):
            a(f"ds_write_b32 v50, v{CS+j} offset:{64*j}")
        for i in range(MT):
            a(f"v_mul_f32 v{60+i}, {f32hex(1.0/640)}, v{60+i}")
            a(f"v_mul_f32 v{62+i}, {f32hex(1.0/640)}, v{62+i}")
            a(f"v_fma_f32 v{62+i}, -v{60+i}, v{60+i}, v{62+i}")
            a(f"v_add_f32 v50, {f32hex(1e-5)}, v{62+i}")
            a(f"v_rsq_f32 v{66+i}, v50")
            a("s_nop 0")
            if ln == 2:
                a(f"v_mul_f32 v50, v{62+i}, v{66+i}")
                a(f"v_mul_f32 v50, v50, v{66+i}")
                a(f"v_add_f32 v50, {f32hex(1e-5)}, v50")
                a("v_rsq_f32 v50, v50")
                a("s_nop 0")
                a(f"v_mul_f32 v{62+i}, v50, v{66+i}")
            else:
                a(f"v_mov_b32 v{62+i}, v{66+i}")
        a("s_waitcnt lgkmcnt(0)")
        for j in range(NT):
            a(f"ds_read_b128 v[{FR+4*j}:{FR+4*j+3}], v51 offset:{64*j}")
        if ln == 2:
            a("s_cmp_lg_u32 s33, 0")
            a(f"s_cbranch_scc1 {name}_nost")
            srd(a, 28, 4, WS_ST, S * 8)
            a("v_cmp_gt_u32 vcc, 16, v2")
            a("s_and_saveexec_b64 s[58:59], vcc")
            for i in range(MT):
                a(f"v_lshlrev_b32 v50, 3, v5")
                a(f"v_mov_b32 v52, v{60+i}")
                a(f"v_mov_b32 v53, v{66+i}")
                a(f"buffer_store_dwordx2 v[52:53], v50, s[28:31], 0 offen offset:{128*i}")
            a("s_mov_b64 exec, s[58:59]")
            a.label(f"{name}_nost")
        a("s_waitcnt lgkmcnt(0)")
        for j in range(NT):
            for i in range(MT):
                for r in range(4):
                    ac = ACC + 4 * (j * MT + i) + r
                    a(f"v_fma_f32 v{ac}, -v{60+i}, v{FR+4*j+r}, v{ac}")
                    a(f"v_mul_f32 v{ac}, v{ac}, v{62+i}")

    def tiles():
        for j in range(NT):
            for i in range(MT):
                yield j, i, ACC + 4 * (j * MT + i), (7 if i == 0 else 16), j * 32

    def store_all(srd_o):
        for j, i, ac, vo, off in tiles():
            a(f"v_cvt_pk_bf16_f32 v50, v{ac}, v{ac+1}")
            a(f"v_cvt_pk_bf16_f32 v51, v{ac+2}, v{ac+3}")
            guard = (epi == 'w3' and j == NT - 1)
            if guard:
                a(f"v_add_u32 v52, {16*j}, v6")
                a(f"v_cmp_gt_u32 vcc, {F}, v52")
                a("s_and_saveexec_b64 s[58:59], vcc")
            a(f"buffer_store_dwordx2 v[50:51], v{vo}, s[{srd_o}:{srd_o+3}], 0 offen offset:{off}")
            if guard:
                a("s_mov_b64 exec, s[58:59]")

    def load_res(srd_r, base):
        n = 0
        for j, i, ac, vo, off in tiles():
            a(f"buffer_load_dwordx2 v[{base+2*n}:{base+2*n+1}], v{vo}, s[{srd_r}:{srd_r+3}], 0 offen offset:{off}")
            n += 1

    def add_res(base):
        n = 0
        for j, i, ac, vo, off in tiles():
            for h in range(2):
                r = base + 2 * n + h
                a(f"v_lshlrev_b32 v50, 16, v{r}")
                a(f"v_and_b32 v51, 0xffff0000, v{r}")
                a(f"v_add_f32 v{ac+2*h}, v{ac+2*h}, v50")
                a(f"v_add_f32 v{ac+2*h+1}, v{ac+2*h+1}, v51")
            n += 1

    def gelu_loop():
        k = 2.0 * 0.7978845608028654 * 1.4426950408889634
        a(f"v_mov_b32 v58, {f32hex(0.044715)}")
        a("s_mov_b32 s70, 0")
        a.label(f"{name}_gl")
        a("s_set_gpr_idx_on s70, gpr_idx(SRC0)")
        for u in range(4):
            a(f"v_mov_b32 v{50+u}, v{ACC+u}")
        a("s_set_gpr_idx_off")
        for u in range(4):
            a(f"v_mul_f32 v{54+u}, v{50+u}, v{50+u}")
        for u in range(4):
            a(f"v_fma_f32 v{54+u}, v{54+u}, v58, 1.0")
        for u in range(4):
            a(f"v_mul_f32 v{54+u}, v{54+u}, v{50+u}")
        for u in range(4):
            a(f"v_mul_f32 v{54+u}, {f32hex(-k)}, v{54+u}")
        for u in range(4):
            a(f"v_exp_f32 v{54+u}, v{54+u}")
        a("s_nop 0")
        for u in range(4):
            a(f"v_add_f32 v{54+u}, 1.0, v{54+u}")
        for u in range(4):
            a(f"v_rcp_f32 v{54+u}, v{54+u}")
        a("s_nop 0")
        for u in range(4):
            a(f"v_mul_f32 v{50+u}, v{50+u}, v{54+u}")
        a("s_set_gpr_idx_on s70, gpr_idx(DST)")
        for u in range(4):
            a(f"v_mov_b32 v{ACC+u}, v{50+u}")
        a("s_set_gpr_idx_off")
        a("s_add_u32 s70, s70, 4")
        a(f"s_cmp_lt_u32 s70, {NACC}")
        a(f"s_cbranch_scc1 {name}_gl")

    RES1 = FR + 64 if False else 140
    RES2 = 140 + 2 * MT * NT
    loop("", issue, PER)
    stamp()
    a("s_nop 7")
    if ln:
        ln_epilogue()
    a("s_waitcnt vmcnt(0)")
    if epi == 'qkv':
        srd(a, 16, 4, WS_Q, ACT_BYTES)
        for r in range(NACC):
            a(f"v_mul_f32 v{ACC+r}, {f32hex(QSCALE)}, v{ACC+r}")
        store_all(16)
    elif epi == 'wo':
        srd(a, 16, 4, WS_H, ACT_BYTES)
        add_res(RES1)
        store_all(16)
    elif epi in ('w1', 'w3'):
        if epi == 'w1':
            srd(a, 16, 4, WS_HH, ACT_BYTES)
        else:
            srd(a, 16, 4, WS_G, S * F * 2)
        gelu_loop()
        store_all(16)
    elif epi == 'w2':
        srd(a, 16, 4, WS_X1, ACT_BYTES)
        n = 0
        for i in range(MT):
            a(f"v_mul_f32 v{60+i}, v{56+2*i}, v{57+2*i}")
            a(f"v_sub_f32 v{60+i}, 0, v{60+i}")
        for j, i, ac, vo, off in tiles():
            for h in range(2):
                r = RES1 + 2 * n + h
                a(f"v_lshlrev_b32 v50, 16, v{r}")
                a(f"v_and_b32 v51, 0xffff0000, v{r}")
                a(f"v_fma_f32 v50, v50, v{57+2*i}, v{60+i}")
                a(f"v_fma_f32 v51, v51, v{57+2*i}, v{60+i}")
                a("v_cvt_pk_bf16_f32 v50, v50, v51")
                a("v_and_b32 v51, 0xffff0000, v50")
                a("v_lshlrev_b32 v50, 16, v50")
                a(f"v_add_f32 v{ac+2*h}, v{ac+2*h}, v50")
                a(f"v_add_f32 v{ac+2*h+1}, v{ac+2*h+1}, v51")
            n += 1
        store_all(16)
    elif epi == 'w4':
        srd(a, 16, 36, 0, ACT_BYTES)
        add_res(RES1)
        for j, i, ac, vo, off in tiles():
            for h in range(2):
                a(f"v_cvt_pk_bf16_f32 v50, v{ac+2*h}, v{ac+2*h+1}")
                a(f"v_lshlrev_b32 v{ac+2*h}, 16, v50")
                a(f"v_and_b32 v{ac+2*h+1}, 0xffff0000, v50")
        add_res(RES2)
        store_all(16)
    a("s_waitcnt vmcnt(0)")
    stamp()
    stamp_out()
    a(f"s_branch {name}_end")
    if epi == 'qkv':
        a.label(f"{name}_kv")
        a("s_waitcnt vmcnt(0)")
        a("s_barrier")
        for i in range(4):
            a(f"s_lshl_b32 s44, s42, 8")
            a(f"v_add_u32 v50, s44, v2")
            a(f"v_add_u32 v50, {64*i}, v50")
            a("v_lshrrev_b32 v51, 4, v50")
            a("v_and_b32 v52, 15, v50")
            a("v_mul_u32_u24 v53, 40, v51")
            a("v_lshl_add_u32 v53, v52, 2, v53")
            a("v_mov_b32 v54, 0x7ffffff0")
            a("v_cmp_gt_u32 vcc, 10, v52")
            a("s_nop 1")
            a(f"v_cndmask_b32 v{240+i}, v54, v53, vcc")
        a("s_mov_b32 s49, 0")
        a("s_mov_b32 s60, 0")
        a("s_mov_b32 s62, 0")
        a("s_mov_b32 s63, 0")
        a("s_lshl_b32 s65, s42, 10")
        a("s_add_u32 s65, s65, 8192")

        def kv_issue(tag):
            a(f"s_cmp_lt_u32 s60, {NC}")
            a("s_cselect_b32 s61, s62, 0x7ffffff0")
            a("s_add_u32 s60, s60, 1")
            a("s_add_u32 s62, s62, 128")
            a("s_add_u32 m0, s63, s64")
            a("s_nop 0")
            a("buffer_load_dwordx4 v10, s[8:11], s61 offen lds")
            a("s_add_u32 m0, m0, 1024")
            a("s_nop 0")
            a("buffer_load_dwordx4 v11, s[8:11], s61 offen lds")
            a("s_add_u32 m0, s63, s65")
            for i in range(4):
                a("s_nop 0")
                a(f"buffer_load_dword v{240+i}, s[12:15], s49 offen lds")
                a("s_add_u32 m0, m0, 256")
            a("s_add_u32 m0, m0, 3072")
            for i in range(4):
                a("s_nop 0")
                a(f"buffer_load_dword v{240+i}, s[16:19], s49 offen lds")
                a("s_add_u32 m0, m0, 256")
            a("s_add_u32 s49, s49, 2560")
            a(f"s_add_u32 s63, s63, {SLOTB}")
            a(f"s_cmp_eq_u32 s63, {R*SLOTB}")
            a("s_cselect_b32 s63, 0, s63")
        for c in range(R - 1):
            kv_issue(c)
        a("v_lshrrev_b32 v24, 2, v3")
        a("v_lshl_add_u32 v24, v4, 3, v24")
        a("v_lshlrev_b32 v24, 6, v24")
        a("v_lshl_add_u32 v24, v25, 3, v24")
        a("v_add_u32 v24, 8192, v24")
        loop("kv", kv_issue, 10, NT=4, woff=lambda ks, j, h: ks*2048 + h*256 + (j & 1)*32 + (j >> 1)*4096)
        a("s_nop 7")
        ln_epilogue()
        srd(a, 16, 4, WS_K, KV_BYTES)
        a("v_lshrrev_b32 v50, 5, v5")
        a("v_lshlrev_b32 v50, 11, v50")
        a("v_and_b32 v51, 31, v5")
        a("v_lshl_add_u32 v50, v51, 4, v50")
        a("v_lshrrev_b32 v51, 1, v4")
        a("v_lshl_add_u32 v50, v51, 9, v50")
        a("v_and_b32 v51, 1, v4")
        a("v_lshl_add_u32 v50, v51, 3, v50")
        for jj in range(2):
            ac = ACC + 4 * jj
            a(f"v_cvt_pk_bf16_f32 v52, v{ac}, v{ac+1}")
            a(f"v_cvt_pk_bf16_f32 v53, v{ac+2}, v{ac+3}")
            a(f"buffer_store_dwordx2 v[52:53], v50, s[16:19], 0 offen offset:{1024*jj}")
        srd(a, 16, 4, WS_V, KV_BYTES)
        a("v_lshrrev_b32 v50, 4, v5")
        a("v_lshlrev_b32 v50, 10, v50")
        a("v_bfe_u32 v51, v5, 2, 1")
        a("v_lshl_add_u32 v50, v51, 9, v50")
        a("v_and_b32 v51, 3, v5")
        a("v_bfe_u32 v52, v5, 3, 1")
        a("v_lshl_add_u32 v51, v52, 2, v51")
        a("v_lshl_add_u32 v50, v51, 1, v50")
        a("v_lshl_add_u32 v50, v4, 6, v50")
        a("v_cmp_eq_u32 vcc, 1, v4")
        a("s_nop 1")
        a(f"v_cndmask_b32 v{ACC+12}, v{ACC+12}, 1.0, vcc")
        for jj in range(2):
            for r in range(4):
                ac = ACC + 8 + 4 * jj + r
                a(f"v_cvt_pk_bf16_f32 v51, v{ac}, v{ac}")
                a(f"buffer_store_short v51, v50, s[16:19], 0 offen offset:{(16*jj + r)*16}")
    a.label(f"{name}_end")
    a("s_endpgm")


def gen_attn(a, name):
    kernel_header(a, name)
    a("s_cmp_ge_u32 s2, 256")
    a(f"s_cbranch_scc1 {name}_end")
    a(f"s_load_dwordx2 s[4:5], s[0:1], {KA['ws']}")
    a("v_lshrrev_b32 v1, 6, v0")
    a("v_and_b32 v2, 63, v0")
    a("v_readfirstlane_b32 s42, v1")
    a("s_lshr_b32 s32, s2, 2")
    a("s_and_b32 s33, s2, 3")
    a("s_lshl_b32 s33, s33, 3")
    a("s_and_b32 s43, s42, 7")
    a("s_add_u32 s33, s33, s43")
    a("s_lshr_b32 s43, s42, 3")
    a("s_waitcnt lgkmcnt(0)")
    srd(a, 8, 4, WS_Q, ACT_BYTES)
    srd(a, 12, 4, WS_K, KV_BYTES)
    srd(a, 16, 4, WS_V, KV_BYTES)
    srd(a, 20, 4, WS_O, ACT_BYTES)
    ST = 100
    a("v_lshrrev_b32 v3, 9, v0")
    a("v_and_b32 v4, 511, v0")
    a("v_lshlrev_b32 v4, 4, v4")
    a("v_lshl_add_u32 v116, v3, 16, v4")
    a("v_lshl_add_u32 v117, v3, 15, v4")
    a("s_mov_b32 s48, 0")

    def issue():
        a(f"buffer_load_dwordx4 v[{ST}:{ST+3}], v116, s[12:15], s48 offen")
        a(f"buffer_load_dwordx4 v[{ST+4}:{ST+7}], v116, s[12:15], s48 offen offset:... ".replace("offset:... ", "") if False else f"buffer_load_dwordx4 v[{ST+4}:{ST+7}], v118, s[12:15], s48 offen")
        a(f"buffer_load_dwordx4 v[{ST+8}:{ST+11}], v116, s[16:19], s48 offen")
        a(f"buffer_load_dwordx4 v[{ST+12}:{ST+15}], v118, s[16:19], s48 offen")
        a("s_add_u32 s48, s48, 16384")

    def write(addr):
        a(f"ds_write_b128 {addr}, v[{ST}:{ST+3}]")
        a(f"ds_write_b128 {addr}, v[{ST+4}:{ST+7}] offset:8192")
        a(f"ds_write_b128 {addr}, v[{ST+8}:{ST+11}] offset:16384")
        a(f"ds_write_b128 {addr}, v[{ST+12}:{ST+15}] offset:24576")
    a("v_add_u32 v118, 8192, v116")
    issue()
    a("v_and_b32 v4, 31, v2")
    a("v_lshrrev_b32 v5, 5, v2")
    a("s_lshl_b32 s34, s32, 5")
    a("v_add_u32 v6, s34, v4")
    a("s_movk_i32 s35, 1280")
    a("v_mul_lo_u32 v6, v6, s35")
    a("s_mul_i32 s36, s33, 40")
    a("v_add_u32 v6, s36, v6")
    a("v_lshl_add_u32 v7, v5, 4, v6")
    a("buffer_load_dwordx2 v[8:9], v7, s[8:11], 0 offen")
    a("buffer_load_dwordx2 v[10:11], v7, s[8:11], 0 offen offset:8")
    a("buffer_load_dwordx2 v[12:13], v6, s[8:11], 0 offen offset:32")
    a("v_mov_b32 v14, 0")
    a("v_mov_b32 v15, 0")
    for r in range(16):
        a(f"v_mov_b32 v{32+r}, 0")
        a(f"v_mov_b32 v{48+r}, 0")
    a("v_mov_b32 v96, 0xff800000")
    a("v_mov_b32 v95, 0xff800000")
    a("s_lshl_b32 s44, s43, 15")
    a("v_lshlrev_b32 v97, 4, v2")
    a("v_add_u32 v97, s44, v97")
    a("s_waitcnt vmcnt(0)")
    a("v_cmp_gt_u32 vcc, 32, v2")
    a("s_nop 1")
    a("v_cndmask_b32 v12, 0, v12, vcc")
    a("v_cndmask_b32 v13, 0, v13, vcc")
    write("v117")
    issue()
    a("s_waitcnt lgkmcnt(0)")
    a("s_barrier")
    SREG = [16, 76]

    def off_of(sreg_t, sdst):
        a(f"s_lshr_b32 s56, {sreg_t}, 3")
        a("s_and_b32 s56, s56, 1")
        a("s_lshl_b32 s56, s56, 16")
        a(f"s_and_b32 {sdst}, {sreg_t}, 7")
        a(f"s_lshl_b32 {sdst}, {sdst}, 11")
        a(f"s_add_u32 {sdst}, {sdst}, s56")

    def qk(p):
        s0 = SREG[p]
        a(f"v_mfma_f32_32x32x16_bf16 v[{s0}:{s0+15}], v[92:95], v[8:11], v[32:47]".replace("v[92:95]", "v[120:123]"))
        a(f"v_mfma_f32_32x32x16_bf16 v[{s0}:{s0+15}], v[124:127], v[12:15], v[{s0}:{s0+15}]")
    a("ds_read_b128 v[120:123], v97")
    a("ds_read_b128 v[124:127], v97 offset:1024")
    a("s_waitcnt lgkmcnt(0)")
    qk(0)
    a("s_mov_b32 s50, 0")
    a.label(f"{name}_loop")
    if os.environ.get("ASTAMP"):
        a("s_memtime s[60:61]")
        a("s_waitcnt lgkmcnt(0)")
        a("s_lshr_b32 m0, s50, 1")
        a("s_nop 3")
        a("v_writelane_b32 v99, s60, m0".replace("v99", "v1"))
    for p in range(2):
        s0 = SREG[p]; s1 = SREG[p ^ 1]
        lab = f"{name}_p{p}"
        if p == 0:
            a("s_and_b32 s57, s50, 7")
            a("s_cmp_lg_u32 s57, 0")
            a(f"s_cbranch_scc1 {lab}_nochunk")
            a("s_barrier")
            a.label(f"{lab}_nochunk")
        off_of("s50", "s58")
        a("v_add_u32 v94, s58, v97")
        a("ds_read_b128 v[64:67], v94 offset:16384".replace("v[64:67]", "v[68:71]"))
        a("ds_read_b128 v[72:75], v94 offset:17408")
        if p == 0:
            a("s_cmp_lg_u32 s57, 6")
            a(f"s_cbranch_scc1 {lab}_nostage")
            a("s_add_u32 s59, s50, 2")
            off_of("s59", "s58")
            a("v_add_u32 v94, s58, v117")
            a("s_waitcnt vmcnt(0)")
            write("v94")
            issue()
            a("s_waitcnt lgkmcnt(0)")
            a("s_barrier")
            a.label(f"{lab}_nostage")
        a("s_add_u32 s59, s50, 1")
        off_of("s59", "s58")
        a("v_add_u32 v94, s58, v97")
        a("ds_read_b128 v[120:123], v94")
        a("ds_read_b128 v[124:127], v94 offset:1024")
        a(f"v_max3_f32 v98, v{s0}, v{s0+1}, v{s0+2}")
        a(f"v_max3_f32 v99, v{s0+3}, v{s0+4}, v{s0+5}")
        a(f"v_max3_f32 v92, v{s0+6}, v{s0+7}, v{s0+8}")
        a(f"v_max3_f32 v93, v{s0+9}, v{s0+10}, v{s0+11}")
        a(f"v_max3_f32 v119, v{s0+12}, v{s0+13}, v{s0+14}")
        a(f"v_max3_f32 v98, v98, v99, v{s0+15}")
        a("v_max3_f32 v98, v98, v92, v93")
        a("v_max_f32 v98, v98, v119")
        a("v_cmp_gt_f32 vcc, v98, v96")
        a("s_add_u32 s50, s50, 1")
        a(f"s_cbranch_vccnz {lab}_rare")
        a.label(f"{lab}_back")
        a("s_waitcnt lgkmcnt(0)")
        qk(p ^ 1)
        for r in range(16):
            a(f"v_exp_f32 v{s0+r}, v{s0+r}")
        for r in range(8):
            a(f"v_cvt_pk_bf16_f32 v{s0+r}, v{s0+2*r}, v{s0+2*r+1}")
        a("s_nop 1")
        a(f"v_mfma_f32_32x32x16_bf16 v[48:63], v[68:71], v[{s0}:{s0+3}], v[48:63]")
        a(f"v_mfma_f32_32x32x16_bf16 v[48:63], v[72:75], v[{s0+4}:{s0+7}], v[48:63]")
    a("s_cmp_lt_u32 s50, 32")
    a(f"s_cbranch_scc1 {name}_loop")
    a(f"s_branch {name}_fin")
    for p in range(2):
        s0 = SREG[p]
        lab = f"{name}_p{p}"
        a.label(f"{lab}_rare")
        a("v_mov_b32 v99, v98")
        a("s_nop 1")
        a("v_permlane32_swap_b32 v98, v99")
        a("s_nop 1")
        a("v_max3_f32 v98, v98, v99, v95")
        a("v_sub_f32 v99, 0, v98")
        a("v_exp_f32 v99, v99")
        a("s_nop 7")
        for r in range(16):
            a(f"v_sub_f32 v{s0+r}, v{s0+r}, v98")
            a(f"v_sub_f32 v{32+r}, v{32+r}, v98")
            a(f"v_mul_f32 v{48+r}, v{48+r}, v99")
        a(f"v_mov_b32 v96, {f32hex(8.0)}")
        a("v_mov_b32 v95, 0")
        a("s_nop 1")
        a(f"s_branch {lab}_back")
    a.label(f"{name}_fin")
    if os.environ.get("ASTAMP"):
        a(f"s_load_dwordx2 s[96:97], s[0:1], {KA['dbg']}")
        a("s_waitcnt lgkmcnt(0)")
        srd(a, 92, 96, 0, 256)
        a("s_cmp_lg_u32 s2, 37")
        a(f"s_cbranch_scc1 {name}_nost")
        a("s_cmp_lg_u32 s42, 0")
        a(f"s_cbranch_scc1 {name}_nost")
        a("v_lshlrev_b32 v119, 2, v2")
        a("buffer_store_dword v1, v119, s[92:95], 0 offen")
        a.label(f"{name}_nost")
    a("s_waitcnt vmcnt(0) lgkmcnt(0)")
    a("s_nop 15")
    a("s_barrier")
    a("s_and_b32 s44, s42, 7")
    a("s_mul_i32 s44, s44, 4352")
    a("v_lshlrev_b32 v94, 2, v2")
    a("v_add_u32 v94, s44, v94")
    a("s_cmp_eq_u32 s43, 0")
    a(f"s_cbranch_scc1 {name}_h0")
    a("ds_write_b32 v94, v32")
    for r in range(16):
        a(f"ds_write_b32 v94, v{48+r} offset:{256*(r+1)}")
    a("s_waitcnt lgkmcnt(0)")
    a("s_barrier")
    a("s_endpgm")
    a.label(f"{name}_h0")
    a("s_barrier")
    a("ds_read_b32 v98, v94")
    for r in range(16):
        a(f"ds_read_b32 v{16+r}, v94 offset:{256*(r+1)}")
    a("s_waitcnt lgkmcnt(0)")
    a("v_min_f32 v99, v98, v32")
    a("v_sub_f32 v92, v99, v32")
    a("v_sub_f32 v93, v99, v98")
    a("v_exp_f32 v92, v92")
    a("v_exp_f32 v93, v93")
    a("s_nop 0")
    for r in range(16):
        a(f"v_mul_f32 v{48+r}, v{48+r}, v92")
        a(f"v_fmac_f32 v{48+r}, v{16+r}, v93")
    a("v_mov_b32 v98, v56")
    a("v_mov_b32 v99, v56")
    a("s_nop 1")
    a("v_permlane32_swap_b32 v98, v99")
    a("s_nop 1")
    a("v_rcp_f32 v99, v99")
    a("s_nop 0")
    for r in range(12):
        a(f"v_mul_f32 v{48+r}, v{48+r}, v99")
    for g in range(3):
        a(f"v_cvt_pk_bf16_f32 v{64+2*g}, v{48+4*g}, v{49+4*g}")
        a(f"v_cvt_pk_bf16_f32 v{65+2*g}, v{50+4*g}, v{51+4*g}")
    a("v_lshl_add_u32 v7, v5, 3, v6")
    a("buffer_store_dwordx2 v[64:65], v7, s[20:23], 0 offen")
    a("buffer_store_dwordx2 v[66:67], v7, s[20:23], 0 offen offset:16")
    a("v_cmp_gt_u32 vcc, 32, v2")
    a("s_and_saveexec_b64 s[50:51], vcc")
    a("buffer_store_dwordx2 v[68:69], v7, s[20:23], 0 offen offset:32")
    a.label(f"{name}_end")
    a("s_endpgm")


def main():
    a = Asm()
    hdr = open("cdna_kernels/%s.s.ref" % NAME).read().split("\n")
    for ln in hdr:
        if ln.startswith("; Override launch"):
            break
        a.raw(ln)
    kernels = [
        ("k1_qkv_kernel", 32 * 9, 256, gemm_lds(80, 4)),
        ("k2_attn_kernel", 256, 1024, 131072),
        ("k3_wo_kernel", 256, 256, gemm_lds(80, 6)),
        ("k4_w1_kernel", 256, 256, gemm_lds(80, 6)),
        ("k5_w2_kernel", 256, 256, gemm_lds(80, 6)),
        ("k6_w3_kernel", 256, 256, gemm_lds(224, 4)),
        ("k7_w4_kernel", 256, 256, gemm_lds(80, 6)),
    ]
    for k, g, b, l in kernels:
        a.raw(f"; @launch kernel={k} grid=({g},1,1) block=({b},1,1) lds={l}")
    a.raw('.amdgcn_target "amdgcn-amd-amdhsa--gfx950"')
    a.raw(".text")
    c80 = dict(BN=80, NSTRIDE=80, NB=8, WM=4, WN=1)
    gen_gemm(a, "k1_qkv_kernel", a_ptr=('arg', KA['x']), K=640, w_ptr=KA['wq'], N=640, R=4, ln=1, shift=False, epi='qkv', **c80)
    gen_attn(a, "k2_attn_kernel")
    gen_gemm(a, "k3_wo_kernel", a_ptr=('ws', WS_O), K=640, w_ptr=KA['wo'], N=640, R=6, ln=0, shift=False, epi='wo', **c80)
    gen_gemm(a, "k4_w1_kernel", a_ptr=('ws', WS_H), K=640, w_ptr=KA['w1'], N=640, R=6, ln=2, shift=False, epi='w1', **c80)
    gen_gemm(a, "k5_w2_kernel", a_ptr=('ws', WS_HH), K=640, w_ptr=KA['w2'], N=640, R=6, ln=0, shift=True, epi='w2', **c80)
    gen_gemm(a, "k6_w3_kernel", a_ptr=('ws', WS_X1), K=640, w_ptr=KA['w3'], N=F, BN=224, NSTRIDE=216, NB=8, WM=2, WN=2, R=4, ln=1, shift=False, epi='w3')
    gen_gemm(a, "k7_w4_kernel", a_ptr=('ws', WS_G), K=F, w_ptr=KA['w4'], N=640, R=6, ln=0, shift=False, epi='w4', **c80)
    a.raw('.section .rodata,"a"')
    for k, g, b, l in kernels:
        kernel_desc(a, k, vgpr=(128 if 'attn' in k else 256))
    open("cdna_kernels/%s.s" % NAME, "w").write(a.text())


if __name__ == "__main__":
    main()
```
